```python
import torch

def _softmax(x, axis=-1):
    return torch.softmax(x, dim=axis)

def _gelu(x):
    return torch.nn.functional.gelu(x, approximate='tanh')

def _silu(x):
    return torch.nn.functional.silu(x)

def _sigmoid(x):
    return torch.sigmoid(x)

def _layernorm(x, axis=-1, eps=1e-05):
    m = x.mean(dim=axis, keepdim=True)
    v = x.var(dim=axis, keepdim=True, unbiased=False)
    return (x - m) / torch.sqrt(v + eps)

def _scatter_add(tgt, idx, src, axis=0):
    return tgt.clone().index_add_(axis, idx, src)

def _segment_sum(src, seg, n):
    out = torch.zeros((n,) + src.shape[1:], dtype=src.dtype)
    return out.index_add_(0, seg, src)

def _pad(x, pw):
    flat = tuple((v for pair in reversed(pw) for v in pair))
    return torch.nn.functional.pad(x, flat)
kernel_name = 'adaLN_cond__mha_block__geglu_ffn__prompt'

def setup_inputs():

    _w = lambda a: (lambda t: t.to(torch.bfloat16) if t.is_floating_point() else t)(torch.as_tensor(a))

    def _A_setup():
        B, S, D, H = (1, 2048, 640, 32)
        return {'x': _w((lambda *s: torch.randn(*s, dtype=torch.bfloat16) * 0.05)(B, S, D)), 'wqkv': _w((lambda *s: torch.randn(*s, dtype=torch.bfloat16) * 0.05)(D, 3 * D)), 'wo': _w((lambda *s: torch.randn(*s, dtype=torch.bfloat16) * 0.05)(D, D))}
    _A_in = _A_setup()

    def _B_setup():
        B, S, D, F = (1, 2048, 640, 1728)
        return {'x': _w((lambda *s: torch.randn(*s, dtype=torch.bfloat16) * 0.05)(B, S, D)), 'w_gate': _w((lambda *s: torch.randn(*s, dtype=torch.bfloat16) * 0.05)(D, F)), 'w_up': _w((lambda *s: torch.randn(*s, dtype=torch.bfloat16) * 0.05)(D, F)), 'w_down': _w((lambda *s: torch.randn(*s, dtype=torch.bfloat16) * 0.05)(F, D))}
    _B_in = _B_setup()
    return {'A_x': _A_in['x'], 'A_wqkv': _A_in['wqkv'], 'A_wo': _A_in['wo'], 'B_x': _B_in['x'], 'B_w_gate': _B_in['w_gate'], 'B_w_up': _B_in['w_up'], 'B_w_down': _B_in['w_down'], 'c': _w((lambda *s: torch.randn(*s, dtype=torch.bfloat16) * 0.1)(1, 640) * 8.0), 'w_mod': _w((lambda *s: torch.randn(*s, dtype=torch.bfloat16) * 0.1)(640, 6 * 640) * 640 ** (-0.5) * 8.0)}

def reference(A_x, A_wqkv, A_wo, B_x, B_w_gate, B_w_up, B_w_down, c, w_mod):

    def _A_ref(x, wqkv, wo):
        B, S, D = x.shape
        H = 32
        Dh = D // H
        qkv = (lambda x, *d: x.permute(*d))((x @ wqkv).reshape(B, S, 3, H, Dh), 2, 0, 3, 1, 4)
        q, k, v = (qkv[0], qkv[1], qkv[2])
        scores = torch.einsum('bhqd,bhkd->bhqk', q, k) * Dh ** (-0.5)
        p = _softmax(scores, axis=-1)
        o = torch.einsum('bhqk,bhkd->bhqd', p, v)
        return (lambda x, *d: x.permute(*d))(o, 0, 2, 1, 3).reshape(B, S, D) @ wo

    def _B_ref(x, w_gate, w_up, w_down):
        return _gelu(x @ w_gate) * (x @ w_up) @ w_down
    x = A_x
    mod = (_silu(c) @ w_mod).reshape(c.shape[0], 6, 1, -1)
    sa, ca, ga, sb, cb, gb = (mod[:, 0].clone(), mod[:, 1].clone(), mod[:, 2].clone(), mod[:, 3].clone(), mod[:, 4].clone(), mod[:, 5].clone())
    h = _layernorm(x, axis=-1) * (1 + ca) + sa
    x = x + ga * _A_ref(h, A_wqkv, A_wo)
    h = _layernorm(x, axis=-1) * (1 + cb) + sb
    x = x + gb * _B_ref(h, B_w_gate, B_w_up, B_w_down)
    return x
```

```python
from dsl import *
SLOT = 24576
HOFF = 11264
ROWB = 56
CFG = dict(nolds=False, nobar=False, nomfma=False, nodma=False, lagprio=True, dmamode="spread", stamp=False,
           pos=dict(pv3=2, m2b=7, pv0=16, s0=24, pv1=28, s1=33, pv2=40, km=35, v1=4, v0=42, bar=37, kr=44), dmapos=(10, 20, 30), xpos=(9, 18, 26, 31))
NSLOT = 3

class Sched:
    def __init__(self): self.items = []
    def op(self, t): self.items.append(("op", t, None))
    def lds(self, t, tag): self.items.append(("lds", t, tag))
    def use(self, t, tags): self.items.append(("use", t, tags))
    def render(self, a, loop=True, pre=()):
        items = self.items
        order = [it[2] for it in items if it[0] == "lds"] if loop else list(pre)
        pos = {}
        for i, t in enumerate(order): pos[t] = i
        n = len(order)
        done = -1
        for kind, t, x in items:
            if kind == "lds":
                pos[x] = n; n += 1
                a(t)
            elif kind == "use":
                need = max(pos[g] for g in x)
                if need > done:
                    cnt = n - 1 - need
                    assert cnt <= 15, cnt
                    a(f"s_waitcnt lgkmcnt({cnt})")
                    done = need
                a(t)
            else:
                a(t)

def attn_iter(sc, R, X, Y, it, mode, sdelta, barrier_code, dmas):
    O, Qm, Qr, Km, KR, V = R["O"], R["Qm"], R["Qr"], R["Km"], R["KR"], R["V"]
    vK, vR, vV, vm = R["vK"], R["vR"], R["vV"], R["vM"]
    P = CFG["pos"]
    main = []
    for g in range(4):
        b = X + 8 * g
        m = vm + (g >> 1)
        if mode == "max":
            for j in range(4):
                main.append(f"v_max3_f32 {v(m)}, {v(b+2*j)}, {v(b+2*j+1)}, {v(m)}")
            for j in range(8): main.append("s_nop 0")
        else:
            for j in range(8):
                if mode == "sub":
                    main.append(f"v_sub_f32 {v(b+j)}, {v(b+j)}, {v(m)}\nv_exp_f32 {v(b+j)}, {v(b+j)}")
                else:
                    main.append(f"v_exp_f32 {v(b+j)}, {v(b+j)}")
            for j in range(4):
                main.append(f"v_cvt_pk_bf16_f32 {v(b+j)}, {v(b+2*j)}, {v(b+2*j+1)}")
    def pv(g, buf):
        o = O + 16 * (g >> 1)
        return f"v_mfma_f32_32x32x16_bf16 {v(o,16)}, {v(V+4*(g&1),4)}, {v(buf+8*g,4)}, {v(o,16)}"
    def vld(m, tile):
        off = (tile * 32 + m * 16) * ROWB
        return [(f"ds_read_b64_tr_b16 {v(V+4*m,2)}, {v(vV)} offset:{off}", f"V{m}a"),
                (f"ds_read_b64_tr_b16 {v(V+4*m+2,2)}, {v(vV)} offset:{off+8*ROWB}", f"V{m}b")]
    nxt = 1 - it
    ev = {}
    def at(p, *acts): ev.setdefault(p, []).extend(acts)
    dopv = mode != "max"
    if CFG["lagprio"]:
        if it == 0: at(10, ("op", "s_setprio 0"))
        if it == 1: at(0, ("op", "s_setprio 2")); at(30, ("op", "s_setprio 1"))
    if dopv: at(P["pv3"], ("use", pv(3, Y), ["V1a", "V1b"]))
    at(P["m2b"], ("use", f"v_mfma_f32_32x32x4_2b_bf16 {v(Y,32)}, {v(KR+2*nxt,2)}, {v(Qr,2)}, 0", ["KR"]))
    if dopv:
        at(P["v1"], *[("lds", t, g) for t, g in vld(1, it)])
        at(P["pv0"], ("use", pv(0, X), ["V0a", "V0b"]))
    at(P["s0"], ("use", f"v_mfma_f32_32x32x16_bf16 {v(Y,16)}, {v(Km,4)}, {v(Qm,4)}, {v(Y,16)}", ["Km"]))
    if dopv: at(P["pv1"], ("use", pv(1, X), ["V1a", "V1b"]))
    at(P["s1"], ("use", f"v_mfma_f32_32x32x16_bf16 {v(Y+16,16)}, {v(Km,4)}, {v(Qm+4,4)}, {v(Y+16,16)}", ["Km"]))
    if dopv: at(P["pv2"], ("use", pv(2, X), ["V0a", "V0b"]))
    if it == 0:
        assert P["bar"] >= 1
        at(P["bar"], ("op", barrier_code + ("s_setprio 3\n" if CFG["lagprio"] else "")))
        at(P["bar"], ("op", f"v_add_u32 {v(vK)}, {sdelta}, {v(vK)}"))
        at(max(P["km"], P["bar"] + 1), ("lds", f"ds_read_b128 {v(Km,4)}, {v(vK)}", "Km"))
        at(max(P["kr"], P["bar"] + 1) - 1, ("op", f"v_add_u32 {v(vR)}, {sdelta}, {v(vR)}"))
        at(max(P["kr"], P["bar"] + 1), ("lds", f"ds_read2_b64 {v(KR,4)}, {v(vR)} offset0:0 offset1:{32*ROWB//8}", "KR"))
    else:
        at(P["km"], ("lds", f"ds_read_b128 {v(Km,4)}, {v(vK)} offset:1024", "Km"))
        at(P["v0"] - 1, ("op", f"v_add_u32 {v(vV)}, {sdelta}, {v(vV)}"))
    if dopv: at(P["v0"], *[("lds", t, g) for t, g in vld(0, nxt)])
    for p, d in dmas: at(p, ("op", d))
    for i, m in enumerate(main):
        sc.op(m)
        for act in ev.get(i, []):
            if act[0] == "op":
                sc.op(act[1])
            elif act[0] == "lds":
                if CFG["nolds"]: continue
                sc.lds(act[1], act[2])
            else:
                t = act[1]
                if CFG["nomfma"]: t = "s_nop 0"
                if CFG["nolds"]: sc.op(t)
                else: sc.use(t, act[2])

def attn_setup(a, R, S, ring0):
    lane = R["lane"]; vK, vR, vV, vD, t0, t1 = R["vK"], R["vR"], R["vV"], R["vDma"], R["vT0"], R["Km"]
    a(f"v_lshlrev_b32 {v(vD)}, 4, {v(lane)}")
    a(f"s_lshl_b32 {s(S['sT'])}, {s(S['sKH'])}, 11\ns_add_u32 {s(S['sT'])}, {s(S['sT'])}, {s(S['sHH'])}")
    a(f"v_add_u32 {v(vK)}, {s(S['sT'])}, {v(vD)}")
    a(f"s_mul_i32 {s(S['sT'])}, {s(S['sKH'])}, {64*ROWB}\ns_add_u32 {s(S['sT'])}, {s(S['sT'])}, {s(S['sHH'])}\ns_add_u32 {s(S['sT'])}, {s(S['sT'])}, 4096")
    a(f"v_and_b32 {v(t0)}, 31, {v(lane)}\nv_mul_u32_u24 {v(vR)}, {ROWB}, {v(t0)}\nv_add_u32 {v(vR)}, 48, {v(vR)}")
    a(f"v_add_u32 {v(vR)}, {s(S['sT'])}, {v(vR)}")
    a(f"v_lshrrev_b32 {v(t0)}, 5, {v(lane)}\nv_lshlrev_b32 {v(t0)}, 2, {v(t0)}\nv_bfe_u32 {v(vV)}, {v(lane)}, 2, 2\nv_add_u32 {v(t0)}, {v(t0)}, {v(vV)}")
    a(f"v_mul_u32_u24 {v(vV)}, {ROWB}, {v(t0)}\nv_add_u32 {v(vV)}, {s(S['sT'])}, {v(vV)}")
    a(f"v_bfe_u32 {v(t0)}, {v(lane)}, 4, 1\nv_lshlrev_b32 {v(t0)}, 2, {v(t0)}\nv_and_b32 {v(t1)}, 3, {v(lane)}\nv_add_u32 {v(t0)}, {v(t0)}, {v(t1)}")
    a(f"v_min_u32 {v(t0)}, 5, {v(t0)}\nv_lshlrev_b32 {v(t0)}, 3, {v(t0)}\nv_add_u32 {v(vV)}, {v(vV)}, {v(t0)}")
    a(f"s_mul_i32 {s(S['sM0Beg'])}, {s(S['sWave'])}, 3072")
    a(f"s_add_u32 {s(S['sKVw'])}, {s(S['sKV'])}, {s(S['sM0Beg'])}")
    a(f"s_add_u32 {s(S['sM0Beg'])}, {s(S['sM0Beg'])}, {ring0}")
    a(f"s_add_u32 {s(S['sM0End'])}, {s(S['sM0Beg'])}, {NSLOT*SLOT}")
    a(f"s_mov_b32 {s(S['sM0'])}, {s(S['sM0Beg'])}\ns_mov_b32 {s(S['sG'])}, {s(S['sTb'])}")
    SB, O, V = R["SB"], R["O"], R["V"]
    for i in range(32): a(f"v_mov_b32 {v(O+i)}, 0")
    for i in range(4): a(f"v_mov_b32 {v(SB+24+i)}, 0\nv_mov_b32 {v(V+4+i)}, 0")
    a(f"s_mov_b32 {s(S['sC'])}, 0\ns_mov_b32 {s(S['sSlot'])}, 0")

def dma_setup(S):
    return (f"s_mul_i32 {s(S['sT'])}, {s(S['sG'])}, {SLOT}\ns_add_u32 {s(S['sT'])}, {s(S['sT'])}, {s(S['sKVw'])}\ns_mov_b32 m0, {s(S['sM0'])}\n"
            f"s_add_u32 {s(S['sG'])}, {s(S['sG'])}, 1\ns_and_b32 {s(S['sG'])}, {s(S['sG'])}, 15\n"
            f"s_add_u32 {s(S['sM0'])}, {s(S['sM0'])}, {SLOT}\ns_cmp_ge_u32 {s(S['sM0'])}, {s(S['sM0End'])}\ns_cselect_b32 {s(S['sM0'])}, {s(S['sM0Beg'])}, {s(S['sM0'])}\n")
def dma1(R, S, srd, i): return f"buffer_load_dwordx4 {v(R['vDma'])}, {s(srd,4)}, {s(S['sT'])} offen offset:{i*1024} sc1 lds\n"
def dma_chunk(R, S, srd): return dma_setup(S) + "".join(dma1(R, S, srd, i) for i in range(3))
def dma_skip(S):
    return (f"s_add_u32 {s(S['sG'])}, {s(S['sG'])}, 1\ns_and_b32 {s(S['sG'])}, {s(S['sG'])}, 15\ns_add_u32 {s(S['sM0'])}, {s(S['sM0'])}, {SLOT}\n")

def attn_head(a, R):
    SA, V, Km, KR, Qm, Qr, vK, vR, vV = (R[n] for n in ("SA", "V", "Km", "KR", "Qm", "Qr", "vK", "vR", "vV"))
    a(f"ds_read2_b64 {v(KR,4)}, {v(vR)} offset0:0 offset1:{32*ROWB//8}\nds_read_b128 {v(Km,4)}, {v(vK)}")
    a(f"ds_read_b64_tr_b16 {v(V,2)}, {v(vV)}\nds_read_b64_tr_b16 {v(V+2,2)}, {v(vV)} offset:{8*ROWB}")
    a("s_waitcnt lgkmcnt(3)")
    a(f"v_mfma_f32_32x32x4_2b_bf16 {v(SA,32)}, {v(KR,2)}, {v(Qr,2)}, 0")
    a("s_nop 15\ns_nop 1\ns_waitcnt lgkmcnt(0)")
    a(f"v_mfma_f32_32x32x16_bf16 {v(SA,16)}, {v(Km,4)}, {v(Qm,4)}, {v(SA,16)}")
    a(f"v_mfma_f32_32x32x16_bf16 {v(SA+16,16)}, {v(Km,4)}, {v(Qm+4,4)}, {v(SA+16,16)}")
    a(f"ds_read_b128 {v(Km,4)}, {v(vK)} offset:1024")
    a("s_nop 10\ns_waitcnt lgkmcnt(0)")

def attn_trip(a, R, S, srd, mode, extras=(), dodma=True):
    a(f"s_add_u32 {s(S['sSlot'])}, {s(S['sSlot'])}, 1\ns_cmp_eq_u32 {s(S['sSlot'])}, {NSLOT}")
    a(f"s_movk_i32 {s(S['sDelta'])}, {SLOT}\ns_cselect_b32 {s(S['sDelta'])}, {(-(NSLOT-1)*SLOT) & 0xffffffff}, {s(S['sDelta'])}\ns_cselect_b32 {s(S['sSlot'])}, 0, {s(S['sSlot'])}")
    sc = Sched()
    bar = f"s_waitcnt vmcnt({len(extras)})\ns_barrier\n"
    dp = CFG["dmapos"]
    d1 = [(dp[0], dma_setup(S) + dma1(R, S, srd, 0)), (dp[1], dma1(R, S, srd, 1)), (dp[2], dma1(R, S, srd, 2))] if dodma else []
    xp = CFG["xpos"]
    d0 = [(xp[i], e) for i, e in enumerate(extras)]
    attn_iter(sc, R, R["SA"], R["SB"], 0, mode, s(S['sDelta']), bar, d0)
    attn_iter(sc, R, R["SB"], R["SA"], 1, mode, s(S['sDelta']), bar, d1)
    sc.render(a)

def attn_loop(a, R, S, srd, mode, upto):
    L = a.newlabel("Lat")
    a(".p2align 3")
    a.label(L)
    attn_trip(a, R, S, srd, mode)
    a(f"s_add_u32 {s(S['sC'])}, {s(S['sC'])}, 1\ns_cmp_lt_u32 {s(S['sC'])}, {upto}\ns_cbranch_scc1 {L}")

def attn_tail(a, R, mode):
    a("s_nop 0\ns_waitcnt lgkmcnt(0)")
    if mode != "max":
        a(f"v_mfma_f32_32x32x16_bf16 {v(R['O']+16,16)}, {v(R['V']+4,4)}, {v(R['SB']+24,4)}, {v(R['O']+16,16)}")
    a("s_setprio 0")
```

```python
class Asm:
    def __init__(self):
        self.lines = []
        self.uid = 0
    def __call__(self, s=""):
        for l in s.split("\n"):
            l = l.strip()
            if l: self.lines.append("    " + l if not l.endswith(":") else l)
    def c(self, s): self.lines.append("    ; " + s)
    def label(self, name): self.lines.append(name + ":")
    def newlabel(self, p="L"):
        self.uid += 1
        return f"{p}_{self.uid}"
    def text(self): return "\n".join(self.lines) + "\n"

def v(a, n=1): return f"v{a}" if n == 1 else f"v[{a}:{a+n-1}]"
def s(a, n=1): return f"s{a}" if n == 1 else f"s[{a}:{a+n-1}]"

class RegAlloc:
    def __init__(self, lo, hi):
        self.lo, self.hi = lo, hi
        self.used = {}
        self.names = {}
        self.high = lo
    def alloc(self, name, n=1, align=1, at=None):
        assert name not in self.names, name
        if n >= 2 and align < 2: align = 2
        if at is None:
            a = self.lo
            while True:
                a = (a + align - 1) // align * align
                if a + n > self.hi: raise RuntimeError(f"out of registers for {name} ({n})")
                if all(r not in self.used for r in range(a, a + n)): break
                a += 1
        else:
            a = at
            assert all(r not in self.used for r in range(a, a + n)), (name, at, [self.used.get(r) for r in range(a, a+n)])
        for r in range(a, a + n): self.used[r] = name
        self.names[name] = (a, n)
        self.high = max(self.high, a + n)
        return a
    def free(self, *names):
        for name in names:
            a, n = self.names.pop(name)
            for r in range(a, a + n): del self.used[r]
    def __getitem__(self, name): return self.names[name][0]

def interleave(main, extra, positions):
    out = []
    k = 0
    while k < len(extra) and positions[k] < 0:
        out.append(extra[k]); k += 1
    for i, m in enumerate(main):
        out.append(m)
        while k < len(extra) and positions[k] == i:
            out.append(extra[k]); k += 1
    assert k == len(extra), (k, len(extra), positions)
    return out

def kernel_wrap(name, body, vgpr=256, sgpr=102, header=""):
    accum = min(256, (vgpr + 3) // 4 * 4)
    return f"""{header}.amdgcn_target "amdgcn-amd-amdhsa--gfx950"
.text
.globl {name}
.p2align 8
.type {name},@function
{name}:
{body}
    s_endpgm
.section .rodata,"a"
.p2align 6
.amdhsa_kernel {name}
  .amdhsa_next_free_vgpr {vgpr}
  .amdhsa_next_free_sgpr {sgpr}
  .amdhsa_accum_offset {accum}
  .amdhsa_group_segment_fixed_size 0
  .amdhsa_kernarg_size 96
  .amdhsa_user_sgpr_count 2
  .amdhsa_user_sgpr_kernarg_segment_ptr 1
  .amdhsa_system_sgpr_workgroup_id_x 1
.end_amdhsa_kernel
"""
```

```python
import re
REG = re.compile(r"\b([vsa])(\d+)\b|\b([vsa])\[(\d+):(\d+)\]")
def regs(op):
    out = set()
    for m in REG.finditer(op):
        if m.group(1): out.add((m.group(1), int(m.group(2))))
        else:
            for r in range(int(m.group(4)), int(m.group(5)) + 1): out.add((m.group(3), r))
    if re.search(r"\bvcc\b", op): out.add(("s", "vcc"))
    if re.search(r"\bm0\b", op): out.add(("s", "m0"))
    if re.search(r"\bexec\b", op): out.add(("s", "exec"))
    return out
TRANS = ("v_exp_", "v_log_", "v_rcp_", "v_rsq_", "v_sqrt_", "v_sin_", "v_cos_")
def split_ops(rest):
    ops, depth, cur = [], 0, ""
    for ch in rest:
        if ch == "[": depth += 1
        if ch == "]": depth -= 1
        if ch == "," and depth == 0: ops.append(cur.strip()); cur = ""
        else: cur += ch
    if cur.strip(): ops.append(cur.strip())
    return ops
class I: pass
def parse(line):
    line = line.split(";")[0].strip()
    if not line or line.endswith(":") or line.startswith("."): return None
    p = line.split(None, 1)
    i = I(); i.mn = p[0]; i.text = line
    ops = split_ops(p[1]) if len(p) > 1 else []
    i.ops = ops
    mn = i.mn
    i.kind = "salu"; i.w = set(); i.r = set(); i.states = 1
    if mn == "s_nop": i.states = int(ops[0], 0) + 1; return i
    if mn.startswith("v_mfma"):
        i.kind = "mfma"; i.w = regs(ops[0]); i.a = regs(ops[1]) | regs(ops[2]); i.c = regs(ops[3]); i.r = i.a | i.c
        i.passes = 16 if "_2b" in mn else (8 if "32x32" in mn else 4)
        return i
    if mn.startswith("v_"):
        i.kind = "valu"
        nd = 1
        if mn.startswith(("v_add_co", "v_addc_co", "v_sub_co", "v_subb_co", "v_div_scale")): nd = 2
        for o in ops[:nd]: i.w |= regs(o.split(" ")[0])
        for o in ops[nd:]: i.r |= regs(o)
        if mn.startswith(("v_fmac", "v_dot2c", "v_pk_fmac")) or "UNUSED_PRESERVE" in line: i.r |= regs(ops[0])
        if mn.startswith("v_permlane") and "swap" in mn: i.w |= regs(ops[1]); i.r |= regs(ops[0])
        if mn.startswith("v_cmpx"): i.w.add(("s", "exec"))
        if mn.startswith("v_writelane"): i.r |= regs(ops[0])
        i.trans = mn.startswith(TRANS)
        i.dpp = "_dpp" in mn or "row_" in line or "quad_perm" in line
        i.perm = mn.startswith("v_permlane")
        i.rl = mn.startswith(("v_readlane", "v_readfirstlane"))
        return i
    if mn.startswith(("buffer_", "global_", "flat_", "ds_")):
        i.kind = "ds" if mn.startswith("ds_") else "vmem"
        islds = line.endswith(" lds") or "_lds_" in mn
        store = "store" in mn or mn.startswith("ds_write") or ("atomic" in mn) or mn.startswith(("ds_add", "ds_or", "ds_max"))
        i.store = store; i.islds = islds
        if mn in ("buffer_wbl2", "buffer_inv"): return i
        if store or islds:
            for o in ops: i.r |= regs(o)
            i.data = set()
            if store and i.kind == "vmem" and ("x4" in mn or "x3" in mn):
                i.data = regs(ops[0]) if mn.startswith("buffer_") else regs(ops[1])
        else:
            i.w = regs(ops[0])
            for o in ops[1:]: i.r |= regs(o)
        if islds: i.r.add(("s", "m0"))
        return i
    if mn.startswith(("s_cmp", "s_cbranch", "s_branch", "s_waitcnt", "s_barrier", "s_setprio", "s_sleep", "s_endpgm", "s_bitcmp")):
        for o in ops: i.r |= regs(o)
        return i
    if ops:
        i.w = regs(ops[0])
        for o in ops[1:]: i.r |= regs(o)
    return i

def need(p, c):
    n = 0
    V = lambda S: {x for x in S if x[0] in "va"}
    Sg = lambda S: {x for x in S if x[0] == "s"}
    if p.kind == "mfma":
        tab = {4: (0, 6, 8, 8, 3), 8: (0, 10, 12, 12, 7), 16: (0, 18, 20, 20, 15)}[p.passes]
        if c.kind == "mfma":
            if p.w & c.c:
                same = (p.w == c.c and p.passes == c.passes)
                n = max(n, tab[0] if same else tab[1])
            if p.w & c.a: n = max(n, tab[2])
            if (p.w & c.w) and not (p.w & c.c) and not (p.w == c.w and p.passes == c.passes):
                n = max(n, tab[1] if p.passes > c.passes else 0)
        elif c.kind in ("valu", "ds", "vmem"):
            if p.w & (V(c.r) | V(c.w)): n = max(n, tab[3])
            if c.kind == "valu" and (p.c & V(c.w)): n = max(n, tab[4])
    if p.kind == "valu":
        if c.kind == "mfma" and (V(p.w) & c.r): n = max(n, 2)
        if c.kind == "mfma" and ("s", "exec") in p.w: n = max(n, 4)
        if c.kind == "valu":
            if p.mn.startswith("v_dot") and c.mn.split("_dpp")[0] != p.mn.split("_dpp")[0] and (V(p.w) & (V(c.r) | V(c.w))): n = max(n, 3)
            if p.trans and not c.trans and (V(p.w) & V(c.r)): n = max(n, 1)
            if (c.dpp or c.perm) and (V(p.w) & V(c.r)): n = max(n, 2)
            if c.rl and (V(p.w) & V(c.r)): n = max(n, 1)
            if Sg(p.w) & Sg(c.r): n = max(n, 2 if not c.rl else 4)
            if "sdwa" in p.mn and (V(p.w) & V(c.r)) and "dst_sel:DWORD" not in p.text: n = max(n, 1)
            if c.dpp and ("s", "exec") in p.w: n = max(n, 5)
        if c.kind == "vmem" and (Sg(p.w) & Sg(c.r)): n = max(n, 5)
        if p.trans and c.kind in ("ds", "vmem", "mfma") and (V(p.w) & V(c.r)): n = max(n, 1 if c.kind != "mfma" else 2)
    if p.kind == "salu" and ("s", "m0") in p.w and c.kind == "vmem" and getattr(c, "islds", False): n = max(n, 1)
    if p.kind == "vmem" and getattr(p, "store", False) and getattr(p, "data", None):
        if c.kind == "valu" and (p.data & V(c.w)): n = max(n, 2)
        if c.kind in ("ds", "vmem", "mfma") and (p.data & V(c.w)): n = max(n, 1)
    return n

def check(text, verbose=True):
    lines = text.split("\n")
    ins, labels = [], {}
    for ln in lines:
        t = ln.split(";")[0].strip()
        if t.endswith(":") and not t.startswith("."): labels[t[:-1]] = len(ins); continue
        i = parse(ln)
        if i: ins.append(i)
    bad = []
    def scan(seq):
        for k, c in enumerate(seq):
            dist = 0
            for j in range(k - 1, max(-1, k - 24), -1):
                p = seq[j]
                n = need(p, c)
                if n > dist: bad.append((p.text, c.text, n, dist))
                dist += p.states
                if dist >= 20: break
    scan(ins)
    for k, i in enumerate(ins):
        if i.mn.startswith(("s_cbranch", "s_branch")) and i.ops[0] in labels:
            t = labels[i.ops[0]]
            seq = ins[max(0, k - 22):k + 1] + ins[t:t + 22]
            n0 = len(bad)
            scan(seq)
    seen = set()
    out = []
    for b in bad:
        if b not in seen: seen.add(b); out.append(b)
    if verbose:
        for b in out[:40]: print("HAZARD need", b[2], "have", b[3], "|", b[0], "->", b[1])
    return out
```

```python
import sys
sys.path.insert(0, "gen")
from dsl import *
import attn
from attn import SLOT, HOFF, ROWB, Sched
NAME = "adaLN_cond__mha_block__geglu_ffn__prompt_kernel"
WS_E = 0
F0, F1, F2, F3, F4, FU, FR = 0x10000, 0x18000, 0x20000, 0x28000, 0x30000, 0x38000, 0x40000
FW = 0xC0000
NORM_A, NORM_B = 32, 56
MP1, MP2, ST = 0x50000, 0x60000, 0x80000
WQF, KV, OF, XG, HF = 0x100000, 0x400000, 0xA00000, 0xD00000, 0x1000000
WOF, WDF, WGF, UVF = 0x1700000, 0x1800000, 0x1B00000, 0x2000000
DBG = 0x2100000
WS_SIZE = 0x10000000
K = 1024
L_GB, L_SB, L_TA, L_ZERO, L_BAD = 0, 1280, 2560, 3520, 3584
L_X = 4 * K
L_BIG = 20 * K
L_SCR = 116 * K
L_G, L_S, L_RED = 152 * K, 152 * K + 2560, 152 * K + 5120
L_OX = 92 * K
L_PL = 100 * K
LDS_BYTES = 160 * K
P_X, P_WQKV, P_WO, P_BX, P_WG, P_WU, P_WD, P_C, P_WMOD, P_OUT, P_DBG, P_WS = [4 + 2 * i for i in range(12)]
SRD = 28
sWave, sTb, sM, sN, sId = 32, 33, 34, 35, 36
sT0, sT1, sT2, sT3, sT4, sT5 = 37, 38, 39, 40, 41, 42
sEx = 44
sPoll = 46
S_AT = dict(sKV=48, sTb=sTb, sWave=sWave, sHH=49, sC=50, sDelta=51, sSlot=52, sM0=53, sG=54, sT=55, sM0Beg=56, sM0End=57, sKH=58, sKVw=59)
sA, sB, sC_, sD = 60, 61, 62, 63
sJd, sJs, sJt, sG2, sPa = 64, 65, 66, 67, 68
sStamp = 70
PIN = 136
POLL_MAX = 30000
DETAIL = True
LOG2E = 1.4426950408889634
import struct
def f2u(x): return struct.unpack("<I", struct.pack("<f", x))[0]

class G:
    def __init__(self, stop=99, stamps=False):
        self.a = Asm(); self.R = RegAlloc(1, 256); self.stop = stop; self.stamps = stamps; self.nst = 0
    def stamp(self, name):
        if self.stamps:
            assert self.nst < 16
            self.a(f"s_memrealtime {s(sStamp + 2*self.nst, 2)}")
            self.stnames = getattr(self, "stnames", []) + [name]
            self.nst += 1

    def stamp_txt(self, name):
        self.stnames.append(name); self.nst += 1
        return f"s_memrealtime {s(sStamp + 2*(self.nst-1), 2)}"
    def poll(self, vaddrs, cmp, label):
        a = self.a
        L = a.newlabel("Lp" + label); E = a.newlabel("Lpe" + label)
        a(f"s_mov_b32 {s(sPoll)}, {POLL_MAX}")
        a.label(L)
        for va, vt in vaddrs: a(f"buffer_load_dword {v(vt)}, {v(va)}, {s(SRD,4)}, 0 offen sc1")
        a("s_waitcnt vmcnt(0)")
        cmp()
        a(f"s_cbranch_vccz {E}")
        a(f"s_sub_u32 {s(sPoll)}, {s(sPoll)}, 1\ns_cmp_gt_i32 {s(sPoll)}, 0\ns_cbranch_scc1 {L}")
        a.label(E)
    def flag_store(self, base, sidx, stride, vt, val=None):
        a = self.a
        a(f"s_mul_i32 {s(sT0)}, {s(sidx)}, {stride}\ns_add_u32 {s(sT0)}, {s(sT0)}, {base}")
        a(f"v_mov_b32 {v(vt)}, {s(sN if val is None else val)}\nv_mov_b32 {v(vt+1)}, 0")
        a(f"s_mov_b64 {s(sEx,2)}, exec\ns_mov_b64 exec, 1")
        a(f"buffer_store_dword {v(vt)}, {v(vt+1)}, {s(SRD,4)}, {s(sT0)} offen sc1")
        a(f"s_mov_b64 exec, {s(sEx,2)}")

    def gemv_issue(self, sCol, sKs, rW, rC, t, nl):
        a = self.a; lane = self.R["lane"]
        a(f"s_lshl_b32 {s(sT0)}, {s(sKs)}, 7\ns_mul_i32 {s(sT1)}, {s(sWave)}, {8*nl}\ns_add_u32 {s(sT0)}, {s(sT0)}, {s(sT1)}")
        a(f"v_lshrrev_b32 {v(t)}, 3, {v(lane)}\nv_add_u32 {v(t)}, {s(sT0)}, {v(t)}")
        a(f"v_lshlrev_b32 {v(t+1)}, 1, {v(t)}")
        a(f"v_mul_u32_u24 {v(t)}, 7680, {v(t)}\nv_and_b32 {v(t+2)}, 7, {v(lane)}\nv_lshlrev_b32 {v(t+2)}, 4, {v(t+2)}")
        a(f"v_add3_u32 {v(t)}, {v(t)}, {v(t+2)}, {s(sCol)}")
        for i in range(nl):
            a(f"global_load_dwordx4 {v(rW+4*i,4)}, {v(t)}, {s(P_WMOD,2)}")
            if i + 1 < nl: a(f"v_add_u32 {v(t)}, {8*7680}, {v(t)}")
        for i in range(nl): a(f"global_load_ushort {v(rC+i)}, {v(t+1)}, {s(P_C,2)} offset:{16*i}")
    def gemv_math(self, rW, rC, acc, t, nl):
        a = self.a; lane = self.R["lane"]
        for i in range(nl):
            c = rC + i
            a(f"v_lshlrev_b32 {v(c)}, 16, {v(c)}\nv_mul_f32 {v(t)}, {f2u(-LOG2E):#x}, {v(c)}\nv_exp_f32 {v(t)}, {v(t)}\ns_nop 0\nv_add_f32 {v(t)}, 1.0, {v(t)}")
            a(f"v_rcp_f32 {v(t)}, {v(t)}\ns_nop 0\nv_mul_f32 {v(c)}, {v(c)}, {v(t)}\nv_cvt_pk_bf16_f32 {v(c)}, {v(c)}, {v(c)}\nv_and_b32 {v(c)}, 0xffff0000, {v(c)}")
        for i in range(nl):
            for j in range(4):
                w = rW + 4 * i + j
                a(f"v_lshlrev_b32 {v(t)}, 16, {v(w)}\nv_and_b32 {v(t+1)}, 0xffff0000, {v(w)}")
                if i == 0: a(f"v_mul_f32 {v(acc+2*j)}, {v(t)}, {v(rC)}\nv_mul_f32 {v(acc+2*j+1)}, {v(t+1)}, {v(rC)}")
                else: a(f"v_fmac_f32 {v(acc+2*j)}, {v(t)}, {v(rC+i)}\nv_fmac_f32 {v(acc+2*j+1)}, {v(t+1)}, {v(rC+i)}")
        a("s_nop 1")
        for j in range(4): a(f"v_permlane32_swap_b32 {v(acc+j)}, {v(acc+4+j)}")
        for j in range(4): a(f"v_add_f32 {v(acc+j)}, {v(acc+j)}, {v(acc+4+j)}")
        a("s_nop 1")
        for j in range(2): a(f"v_permlane16_swap_b32 {v(acc+j)}, {v(acc+2+j)}")
        for j in range(2): a(f"v_add_f32 {v(acc+j)}, {v(acc+j)}, {v(acc+2+j)}")
        a("s_nop 1")
        for j in range(2): a(f"v_add_f32_dpp {v(acc+j)}, {v(acc+j)}, {v(acc+j)} row_ror:8 row_mask:0xf bank_mask:0xf")
        a(f"v_and_b32 {v(t)}, 7, {v(lane)}\nv_lshlrev_b32 {v(t)}, 5, {v(t)}\nv_lshrrev_b32 {v(t+1)}, 5, {v(lane)}\nv_lshl_add_u32 {v(t)}, {v(t+1)}, 4, {v(t)}")
        a(f"v_bfe_u32 {v(t+1)}, {v(lane)}, 4, 1\nv_lshl_add_u32 {v(t)}, {v(t+1)}, 3, {v(t)}")
        a(f"s_lshl_b32 {s(sT0)}, {s(sWave)}, 8\ns_add_u32 {s(sT0)}, {s(sT0)}, {L_RED}\nv_add_u32 {v(t)}, {s(sT0)}, {v(t)}")
        a(f"ds_write_b64 {v(t)}, {v(acc,2)}")
    def gemv_final(self, sDst, acc, t, nw):
        a = self.a; lane = self.R["lane"]
        a(f"v_lshlrev_b32 {v(t)}, 2, {v(lane)}\nv_add_u32 {v(t+1)}, {L_RED}, {v(t)}")
        for i in range(nw // 2): a(f"ds_read2st64_b32 {v(acc+2*i,2)}, {v(t+1)} offset0:{2*i} offset1:{2*i+1}")
        a("s_waitcnt lgkmcnt(0)")
        for j in ((4, 2, 1) if nw == 8 else (2, 1)):
            for i in range(j): a(f"v_add_f32 {v(acc+i)}, {v(acc+i)}, {v(acc+i+j)}")
        a(f"buffer_store_dword {v(acc)}, {v(t)}, {s(SRD,4)}, {s(sDst)} offen sc1")

    def p01(self):
        a, R = self.a, self.R
        lane = R.alloc("lane", at=1)
        t = R.alloc("t", 8, at=2)
        gW = R.alloc("gW", 8, at=244); gC = R.alloc("gC", 2, at=252)
        X = R.alloc("X", 80, 4)
        ACC = R.alloc("ACC", 64, 4)
        GD = R.alloc("GD", 10, 2)
        WF = R.alloc("WF", 32, 4)
        SF = R.alloc("SF", 16, 4)
        HB = R.alloc("HB", 8, 4)
        vA = R.alloc("vA"); vB = R.alloc("vB"); vst = R.alloc("vst", 4, 2)
        a(f"s_cmp_ge_u32 s2, 256\ns_cbranch_scc1 Lend")
        a(f"s_load_dwordx16 s[4:19], s[0:1], 0\ns_load_dwordx8 s[20:27], s[0:1], 64")
        self.stamp("start")
        a(f"v_lshrrev_b32 {v(t)}, 6, v0\nv_and_b32 {v(lane)}, 63, v0\ns_nop 0\nv_readfirstlane_b32 {s(sWave)}, {v(t)}")
        a(f"v_mov_b32 {v(t)}, 0\nv_mov_b32 {v(t+1)}, 0\nv_lshlrev_b32 {v(t+2)}, 3, {v(lane)}\nds_write_b64 {v(t+2)}, {v(t,2)} offset:{L_ZERO}")
        a(f"s_and_b32 {s(sT0)}, s2, 1\ns_lshl_b32 {s(sT0)}, {s(sT0)}, 3\ns_bfe_u32 {s(sT1)}, s2, 0x30003\ns_add_u32 {s(sM)}, {s(sT0)}, {s(sT1)}")
        a(f"s_bfe_u32 {s(sT0)}, s2, 0x20001\ns_lshl_b32 {s(sT0)}, {s(sT0)}, 2\ns_lshr_b32 {s(sT1)}, s2, 6\ns_add_u32 {s(sTb)}, {s(sT0)}, {s(sT1)}")
        a(f"s_lshl_b32 {s(sId)}, {s(sTb)}, 4\ns_add_u32 {s(sId)}, {s(sId)}, {s(sM)}")
        a(f"s_mul_i32 {s(sA)}, s2, 3277\ns_lshr_b32 {s(sA)}, {s(sA)}, 16\ns_mul_i32 {s(sT0)}, {s(sA)}, 20\ns_sub_u32 {s(sB)}, s2, {s(sT0)}\ns_lshl_b32 {s(sB)}, {s(sB)}, 7")
        a(f"s_lshl_b32 {s(sC_)}, {s(sWave)}, 4\ns_add_u32 {s(sC_)}, {s(sC_)}, {s(sTb)}")
        a("s_waitcnt lgkmcnt(0)")
        a(f"s_load_dword {s(sN)}, {s(P_WS,2)}, {WS_E}")
        a(f"s_mov_b32 {s(SRD)}, {s(P_WS)}\ns_mov_b32 {s(SRD+1)}, {s(P_WS+1)}\ns_mov_b32 {s(SRD+2)}, {WS_SIZE:#x}\ns_mov_b32 {s(SRD+3)}, 0x20000")
        def xbase(sw):
            a(f"s_and_b32 {s(sT0)}, {s(sw)}, 3\ns_lshl_b32 {s(sT0)}, {s(sT0)}, 5\ns_lshl_b32 {s(sT1)}, {s(sTb)}, 7\ns_add_u32 {s(sT0)}, {s(sT0)}, {s(sT1)}")
            a(f"s_mul_i32 {s(sT0)}, {s(sT0)}, 1280\ns_lshr_b32 {s(sT1)}, {s(sw)}, 2\ns_mul_i32 {s(sT1)}, {s(sT1)}, 640\ns_add_u32 {s(sT0)}, {s(sT0)}, {s(sT1)}")
        def xaddr(sw):
            xbase(sw)
            a(f"v_lshrrev_b32 {v(t)}, 3, {v(lane)}\nv_lshrrev_b32 {v(t+1)}, 4, {v(lane)}\nv_and_b32 {v(t+2)}, 7, {v(lane)}")
            a(f"v_xor_b32 {v(t+2)}, {v(t+2)}, {v(t+1)}\nv_mul_u32_u24 {v(t)}, 1280, {v(t)}\nv_add_u32 {v(t)}, {s(sT0)}, {v(t)}")
            a(f"v_lshl_add_u32 {v(vA)}, {v(t+2)}, 4, {v(t)}\nv_xor_b32 {v(t+2)}, 4, {v(t+2)}\nv_lshl_add_u32 {v(vB)}, {v(t+2)}, 4, {v(t)}")
            a(f"v_add_u32 {v(vB)}, {8*1280}, {v(vB)}\nv_add_u32 {v(HB)}, {16*1280}, {v(vA)}\nv_add_u32 {v(HB+1)}, {16*1280}, {v(vB)}")
        XA = (vA, vB, HB, HB + 1)
        def xdirect(): xaddr(sWave)
        a(f"s_cmp_ge_u32 {s(sWave)}, 4\ns_cbranch_scc1 Lxw")
        a(f"s_cmp_ge_u32 s2, 100\ns_cbranch_scc1 Lg1a")
        self.gemv_issue(sB, sA, ACC + 16, ACC + 32, t, 4)
        a.label("Lg1a")
        a(f"s_cmp_ge_u32 {s(sC_)}, 40\ns_cbranch_scc1 Lw1a")
        a(f"v_and_b32 {v(t)}, 15, {v(lane)}\nv_min_u32 {v(t)}, 14, {v(t)}\nv_mul_u32_u24 {v(t+1)}, 52, {v(t)}\nv_lshrrev_b32 {v(t+1)}, 8, {v(t+1)}")
        a(f"v_mul_u32_u24 {v(t+1)}, 1200, {v(t+1)}\nv_lshl_add_u32 {v(t)}, {v(t)}, 4, {v(t+1)}")
        a(f"v_lshrrev_b32 {v(t+1)}, 4, {v(lane)}\nv_mul_u32_u24 {v(t+1)}, 3840, {v(t+1)}")
        a(f"s_mul_i32 {s(sT0)}, {s(sC_)}, {16*3840}\ns_mul_i32 {s(sT1)}, {s(sM)}, 80\ns_add_u32 {s(sT0)}, {s(sT0)}, {s(sT1)}")
        a(f"v_add3_u32 {v(t)}, {v(t)}, {v(t+1)}, {s(sT0)}")
        a(f"s_lshl_b32 {s(sT0)}, {s(sWave)}, 12\ns_add_u32 m0, {s(sT0)}, {L_X}\ns_nop 0")
        for i in range(4):
            a(f"global_load_lds_dwordx4 {v(t)}, {s(P_WQKV,2)}")
            if i < 3: a(f"v_add_u32 {v(t)}, {4*3840}, {v(t)}\ns_add_u32 m0, m0, 1024\ns_nop 0")
        a.label("Lw1a")
        a("s_barrier")
        a(f"s_waitcnt lgkmcnt(0)\ns_mul_i32 {s(sN)}, {s(sN)}, 0x9E3779B1\ns_add_u32 {s(sN)}, {s(sN)}, 0x7F4A7C15")
        a(f"s_cmp_ge_u32 s2, 100\ns_cbranch_scc1 Lg1b")
        a(f"s_cmp_ge_u32 {s(sC_)}, 40\ns_cbranch_scc1 Lg1c\ns_waitcnt vmcnt(4)\ns_branch Lg1d")
        a.label("Lg1c")
        a("s_waitcnt vmcnt(0)")
        a.label("Lg1d")
        self.gemv_math(ACC + 16, ACC + 32, ACC, t, 4)
        a(f"v_mov_b32 {v(t)}, 1\nv_mov_b32 {v(t+1)}, {L_BAD+4}\ns_waitcnt lgkmcnt(0)\ns_mov_b64 {s(sEx,2)}, exec\ns_mov_b64 exec, 1")
        a(f"ds_add_rtn_u32 {v(t)}, {v(t+1)}, {v(t)}\ns_waitcnt lgkmcnt(0)\ns_mov_b64 exec, {s(sEx,2)}\nv_readfirstlane_b32 {s(sT3)}, {v(t)}")
        a(f"s_cmp_lg_u32 {s(sT3)}, 3\ns_cbranch_scc1 Lg1b")
        a(f"s_mul_i32 {s(sT0)}, {s(sA)}, 5120\ns_lshl_b32 {s(sT1)}, {s(sB)}, 1\ns_add_u32 {s(sT0)}, {s(sT0)}, {s(sT1)}\ns_add_u32 {s(sT2)}, {s(sT0)}, {MP1:#x}")
        self.gemv_final(sT2, ACC, t, 4)
        a("s_waitcnt vmcnt(0)")
        self.flag_store(F0, 2, 128, t)
        a.label("Lg1b")
        a(f"s_cmp_ge_u32 {s(sC_)}, 40\ns_cbranch_scc1 Lw1b")
        a(f"v_lshrrev_b32 {v(t)}, 5, {v(lane)}\nv_lshlrev_b32 {v(t)}, 3, {v(t)}\nv_bfe_u32 {v(t+1)}, {v(lane)}, 2, 2\nv_add_u32 {v(t)}, {v(t)}, {v(t+1)}")
        a(f"s_lshl_b32 {s(sT0)}, {s(sWave)}, 12\ns_add_u32 {s(sT0)}, {s(sT0)}, {L_X}\nv_lshl_add_u32 {v(t)}, {v(t)}, 8, {s(sT0)}")
        a(f"v_bfe_u32 {v(t+1)}, {v(lane)}, 4, 1\nv_and_b32 {v(t+2)}, 3, {v(lane)}")
        a(f"v_mul_u32_u24 {v(t+3)}, 40, {v(t+1)}\nv_lshl_add_u32 {v(t+3)}, {v(t+2)}, 3, {v(t+3)}\nv_add_u32 {v(t+3)}, {v(t+3)}, {v(t)}")
        a(f"v_lshl_add_u32 {v(t+1)}, {v(t+1)}, 2, {v(t+2)}\nv_or_b32 {v(t+1)}, 0x0c0c0c00, {v(t+1)}")
        tab = [20, 22, 21, 23, 24, 14, 4, 4]
        lo = sum(x << (8 * i) for i, x in enumerate(tab[:4])); hi = sum(x << (8 * i) for i, x in enumerate(tab[4:]))
        a(f"s_mov_b32 {s(sT1)}, {hi:#x}\nv_mov_b32 {v(t+2)}, {lo:#x}\nv_perm_b32 {v(t+1)}, {s(sT1)}, {v(t+2)}, {v(t+1)}")
        a(f"v_lshl_add_u32 {v(t+1)}, {v(t+1)}, 3, {v(t)}")
        a("s_waitcnt vmcnt(0)")
        for T, (va, off) in enumerate(((t+3, 0), (t+3, 80), (t+1, 0), (t+1, 40))):
            for jj in range(2):
                a(f"ds_read_b64_tr_b16 {v(WF+4*T+2*jj,2)}, {v(va)} offset:{off + jj*1024}")
        a(f"s_mul_i32 {s(sT3)}, {s(sM)}, 40\ns_add_u32 {s(sT3)}, {s(sT3)}, {s(sC_)}\ns_lshl_b32 {s(sT0)}, {s(sT3)}, 12\ns_add_u32 {s(sT0)}, {s(sT0)}, {WQF:#x}")
        a(f"v_lshlrev_b32 {v(t)}, 4, {v(lane)}")
        for T in range(4):
            a(f"s_waitcnt lgkmcnt({6-2*T})\nbuffer_store_dwordx4 {v(WF+4*T,4)}, {v(t)}, {s(SRD,4)}, {s(sT0)} offen offset:{T*1024} sc1")
        xdirect()
        a("s_waitcnt vmcnt(0)")
        self.flag_store(FW, sT3, 128, t)
        a("s_branch Lj0")
        a.label("Lw1b")
        xdirect()
        a("s_branch Lj0")
        a.label("Lxw")
        a(f"s_sub_u32 {s(sT2)}, {s(sWave)}, 4")
        xaddr(sT2)
        a(f"v_and_b32 {v(t)}, 31, {v(lane)}\nv_mul_u32_u24 {v(t)}, 1280, {v(t)}\nv_lshrrev_b32 {v(t+1)}, 5, {v(lane)}\nv_mul_u32_u24 {v(t+1)}, 640, {v(t+1)}")
        a(f"v_add3_u32 {v(t)}, {v(t)}, {v(t+1)}, {s(sT0)}\nglobal_load_dword {v(HB+2)}, {v(t)}, {s(P_X,2)} offset:512")
        a(f"s_lshl_b32 {s(sD)}, {s(sT2)}, 14\ns_add_u32 {s(sD)}, {s(sD)}, {L_BIG}")
        first = True
        for kh in range(2):
            for L in range(4):
                for i in range(4):
                    src = kh * 640 + L * 128
                    ldsoff = kh * 65536 + L * 4096 + i * 1024
                    a(f"s_add_u32 m0, {s(sD)}, {ldsoff - src}\ns_nop 0")
                    a(f"global_load_lds_dwordx4 {v(XA[i])}, {s(P_X,2)} offset:{src}")
                    if first: a("s_barrier"); first = False
        for r_ in XA: a(f"v_add_u32 {v(r_)}, 640, {v(r_)}")
        a(f"s_cmp_lg_u32 {s(sWave)}, 7\ns_cbranch_scc1 Lcw")
        a("s_getpc_b64 s[40:41]")
        a.label("Lpc")
        a(f"s_lshr_b32 {s(sT0)}, s2, 3\ns_lshl_b32 {s(sT0)}, {s(sT0)}, 11\nv_lshl_add_u32 {v(t)}, {v(lane)}, 4, {s(sT0)}")
        a(f"v_min_u32 {v(t)}, Lcode_end-Lpc-2048, {v(t)}")
        a(f"global_load_dwordx4 {v(SF,4)}, {v(t)}, s[40:41]\nglobal_load_dwordx4 {v(SF+4,4)}, {v(t)}, s[40:41] offset:1024")
        a.label("Lcw")
        a(f"s_waitcnt lgkmcnt(0)\ns_mul_i32 {s(sN)}, {s(sN)}, 0x9E3779B1\ns_add_u32 {s(sN)}, {s(sN)}, 0x7F4A7C15")
        a.label("Lj0")
        S1, S2 = vst, vst + 1
        a(f"v_mov_b32 {v(S1)}, 0\nv_mov_b32 {v(S2)}, 0\nv_mov_b32 {v(vst+2)}, 0\nv_mov_b32 {v(vst+3)}, 0\ns_mov_b32 {s(sT5)}, 0x3f803f80")
        a(f"s_and_b32 {s(sT0)}, {s(sWave)}, 3\ns_lshl_b32 {s(sT0)}, {s(sT0)}, 14\ns_lshr_b32 {s(sT1)}, {s(sWave)}, 2\ns_lshl_b32 {s(sT1)}, {s(sT1)}, 16")
        a(f"s_add_u32 {s(sD)}, {s(sT0)}, {s(sT1)}\ns_add_u32 {s(sD)}, {s(sD)}, {L_BIG}")
        a(f"v_and_b32 {v(t)}, 31, {v(lane)}\nv_bfe_u32 {v(t+1)}, {v(lane)}, 1, 3\nv_lshrrev_b32 {v(t+2)}, 5, {v(lane)}\nv_xor_b32 {v(t+1)}, {v(t+1)}, {v(t+2)}")
        a(f"v_lshl_add_u32 {v(t)}, {v(t)}, 7, {s(sD)}")
        for q in range(4):
            a(f"v_xor_b32 {v(t+2)}, {2*q}, {v(t+1)}\nv_lshl_add_u32 {v(t+4+q)}, {v(t+2)}, 4, {v(t)}")
        a("s_waitcnt vmcnt(0)\ns_barrier")
        for L in range(4):
            for q in range(4):
                a(f"ds_read_b128 {v(X+4*(4*L+q),4)}, {v(t+4+q)} offset:{L*4096}")
        def stats(lo_, hi_):
            for r in range(lo_, hi_):
                k = 2 * (r & 1)
                a(f"v_dot2_f32_bf16 {v(S1+k)}, {v(X+r)}, {s(sT5)}, {v(S1+k)}\nv_dot2_f32_bf16 {v(S2+k)}, {v(X+r)}, {v(X+r)}, {v(S2+k)}")
        a("s_waitcnt lgkmcnt(12)")
        for i in range(4):
            a(f"s_add_u32 m0, {s(sD)}, {i*1024 - 512}\ns_nop 0\nglobal_load_lds_dwordx4 {v(XA[i])}, {s(P_X,2)} offset:512")
        for L in range(4):
            if L: a(f"s_waitcnt lgkmcnt({12-4*L})")
            stats(16 * L, 16 * L + 16)
        a("s_waitcnt vmcnt(0)")
        for q in range(4): a(f"ds_read_b128 {v(X+64+4*q,4)}, {v(t+4+q)}")
        a("s_waitcnt lgkmcnt(0)")
        stats(64, 80)
        a(f"s_nop 2\nv_add_f32 {v(S1)}, {v(S1)}, {v(vst+2)}\nv_add_f32 {v(S2)}, {v(S2)}, {v(vst+3)}")
        a(f"v_mov_b32 {v(vst+2)}, {v(S1)}\nv_mov_b32 {v(vst+3)}, {v(S2)}\ns_nop 1")
        a(f"v_permlane32_swap_b32 {v(S1)}, {v(vst+2)}\nv_permlane32_swap_b32 {v(S2)}, {v(vst+3)}")
        a(f"v_add_f32 {v(S1)}, {v(S1)}, {v(vst+2)}\nv_add_f32 {v(S2)}, {v(S2)}, {v(vst+3)}")
        a(f"s_lshl_b32 {s(sT0)}, {s(sWave)}, 9\ns_add_u32 {s(sT0)}, {s(sT0)}, {L_X+12288}\nv_lshl_add_u32 {v(t)}, {v(lane)}, 3, {s(sT0)}")
        a(f"ds_write_b64 {v(t)}, {v(S1,2)}\nv_xor_b32 {v(t)}, 2048, {v(t)}\ns_waitcnt lgkmcnt(0)\ns_barrier")
        a(f"ds_read_b64 {v(vst+2,2)}, {v(t)}\ns_waitcnt lgkmcnt(0)")
        a(f"v_add_f32 {v(S1)}, {v(S1)}, {v(vst+2)}\nv_add_f32 {v(S2)}, {v(S2)}, {v(vst+3)}")
        a(f"v_mul_f32 {v(S1)}, {f2u(1/640):#x}, {v(S1)}\nv_mul_f32 {v(S2)}, {f2u(1/640):#x}, {v(S2)}")
        a(f"v_fma_f32 {v(S2)}, -{v(S1)}, {v(S1)}, {v(S2)}\nv_max_f32 {v(S2)}, 0, {v(S2)}\nv_add_f32 {v(S2)}, {f2u(1e-5):#x}, {v(S2)}")
        a(f"v_rsq_f32 {v(vst+2)}, {v(S2)}\ns_nop 0\nv_mov_b32 {v(vst+3)}, {v(vst+2)}")
        a(f"v_mul_f32 {v(S1)}, {v(S1)}, {v(vst+2)}\nv_sub_f32 {v(S1)}, 0, {v(S1)}\nv_mov_b32 {v(S2)}, {v(S1)}")
        def norm(lo_, hi_):
            for r in range(lo_, hi_):
                u = t + 2 * (r & 1)
                a(f"v_lshlrev_b32 {v(u)}, 16, {v(X+r)}\nv_and_b32 {v(u+1)}, 0xffff0000, {v(X+r)}")
                a(f"v_pk_fma_f32 {v(u,2)}, {v(u,2)}, {v(vst+2,2)}, {v(vst,2)}\nv_cvt_pk_bf16_f32 {v(X+r)}, {v(u)}, {v(u+1)}")
        a(f"s_cmp_lg_u32 {s(sWave)}, 0\ns_cbranch_scc1 Lp0")
        a(f"v_lshlrev_b32 {v(t+4)}, 7, {v(lane)}\nv_min_u32 {v(t+5)}, {35*128}, {v(t+4)}\nv_min_u32 {v(t+6)}, {39*128}, {v(t+4)}")
        a(f"v_add_u32 {v(t+4)}, {F0:#x}, {v(t+4)}\nv_add_u32 {v(t+5)}, {F0+64*128:#x}, {v(t+5)}")
        a(f"s_mul_i32 {s(sT0)}, {s(sM)}, {40*128}\ns_add_u32 {s(sT0)}, {s(sT0)}, {FW:#x}\nv_add_u32 {v(t+6)}, {s(sT0)}, {v(t+6)}")
        def cmp3():
            for j in range(3): a(f"v_xor_b32 {v(t+j)}, {s(sN)}, {v(t+j)}")
            a(f"v_or3_b32 {v(t)}, {v(t)}, {v(t+1)}, {v(t+2)}\nv_cmp_ne_u32 vcc, 0, {v(t)}")
        self.poll([(t+4, t), (t+5, t+1), (t+6, t+2)], cmp3, "0")
        a("s_branch Lp0b")
        a.label("Lp0")
        norm(0, NORM_A)
        a.label("Lp0b")
        a("s_barrier")
        self.stamp("f0seen")
        PT = WF
        a(f"v_lshlrev_b32 {v(vA)}, 4, v0\nv_cmp_gt_u32 vcc, 320, v0\ns_and_saveexec_b64 {s(sEx,2)}, vcc\ns_cbranch_execz Lmp1")
        a(f"s_mov_b32 {s(sT0)}, {MP1:#x}")
        for i in range(5):
            a(f"buffer_load_dwordx4 {v(PT+4*i,4)}, {v(vA)}, {s(SRD,4)}, {s(sT0)} offen sc1")
            if i < 4: a(f"s_add_u32 {s(sT0)}, {s(sT0)}, 5120")
        a.label("Lmp1")
        a(f"s_mov_b64 exec, {s(sEx,2)}")
        a(f"v_lshlrev_b32 {v(vB)}, 4, {v(lane)}\nv_lshlrev_b32 {v(t+6)}, 4, {v(lane)}")
        a(f"s_lshr_b32 {s(sT0)}, {s(sWave)}, 2\ns_mul_i32 {s(sT0)}, {s(sT0)}, 20\ns_and_b32 {s(sT1)}, {s(sWave)}, 3\ns_add_u32 {s(sT0)}, {s(sT0)}, {s(sT1)}")
        a(f"s_mul_i32 {s(sT1)}, {s(sM)}, 40\ns_add_u32 {s(sT0)}, {s(sT0)}, {s(sT1)}\ns_lshl_b32 {s(sA)}, {s(sT0)}, 12\ns_add_u32 {s(sA)}, {s(sA)}, {WQF:#x}")
        a(f"s_lshl_b32 {s(sB)}, {s(sWave)}, 12\ns_add_u32 {s(sB)}, {s(sB)}, {L_BIG}")
        def wdma(gr):
            o = f"s_add_u32 {s(sT0)}, {s(sA)}, {gr*16384}\ns_add_u32 m0, {s(sB)}, {(gr%3)*32768}\ns_nop 0\n"
            for i in range(4): o += f"buffer_load_dwordx4 {v(t+6)}, {s(SRD,4)}, {s(sT0)} offen offset:{i*1024} sc1 lds\n"
            return o
        a(wdma(0))
        a(f"s_cmp_lg_u32 {s(sWave)}, 0\ns_cbranch_scc1 Lp0c")
        norm(0, NORM_A)
        a.label("Lp0c")
        norm(NORM_A, NORM_B)
        a(f"v_cmp_gt_u32 vcc, 320, v0\ns_and_saveexec_b64 {s(sEx,2)}, vcc\ns_cbranch_execz Lmp2")
        a(f"s_waitcnt vmcnt(4)")
        for j in range(4):
            a(f"v_add_f32 {v(PT+j)}, {v(PT+j)}, {v(PT+4+j)}\nv_add_f32 {v(PT+8+j)}, {v(PT+8+j)}, {v(PT+12+j)}")
            a(f"v_add_f32 {v(PT+j)}, {v(PT+j)}, {v(PT+16+j)}\nv_add_f32 {v(PT+j)}, {v(PT+j)}, {v(PT+8+j)}")
        a(f"v_cmp_le_u32 vcc, 160, v0\nv_mov_b32 {v(t+2)}, 1.0\ns_nop 0\nv_cndmask_b32 {v(t+2)}, 0, {v(t+2)}, vcc")
        for j in (0, 2):
            a(f"v_cvt_pk_bf16_f32 {v(t)}, {v(PT+j)}, {v(PT+j+1)}\nv_lshlrev_b32 {v(PT+j)}, 16, {v(t)}\nv_and_b32 {v(PT+j+1)}, 0xffff0000, {v(t)}")
            a(f"v_add_f32 {v(PT+j)}, {v(PT+j)}, {v(t+2)}\nv_add_f32 {v(PT+j+1)}, {v(PT+j+1)}, {v(t+2)}")
            a(f"v_cvt_pk_bf16_f32 {v(t)}, {v(PT+j)}, {v(PT+j+1)}\nv_lshlrev_b32 {v(PT+j)}, 16, {v(t)}\nv_and_b32 {v(PT+j+1)}, 0xffff0000, {v(t)}")
        a(f"v_add_u32 {v(t)}, {L_S}, {v(vA)}\nv_add_u32 {v(t+1)}, {L_G-2560}, {v(vA)}\nv_cndmask_b32 {v(t)}, {v(t)}, {v(t+1)}, vcc")
        a(f"ds_write_b128 {v(t)}, {v(PT,4)}")
        a.label("Lmp2")
        a(f"s_mov_b64 exec, {s(sEx,2)}")
        a(wdma(1)); a(wdma(2))
        side = self.sj1_issue()
        norm(NORM_B, 80)
        a(f"s_waitcnt vmcnt({8+side}) lgkmcnt(0)\ns_barrier")
        self.stamp("p1go")
        a(f"v_bfe_u32 {v(t)}, {v(lane)}, 3, 1\nv_lshlrev_b32 {v(t)}, 4, {v(t)}\nv_lshrrev_b32 {v(t+1)}, 5, {v(lane)}\nv_lshl_add_u32 {v(t)}, {v(t+1)}, 3, {v(t)}")
        a(f"v_and_b32 {v(t+2)}, 7, {v(lane)}\nv_add_u32 {v(t)}, {v(t)}, {v(t+2)}")
        a(f"s_lshr_b32 {s(sT0)}, {s(sWave)}, 2\ns_mul_i32 {s(sT1)}, {s(sT0)}, 1280\ns_add_u32 {s(sT1)}, {s(sT1)}, {L_G}\nv_lshl_add_u32 {v(t)}, {v(t)}, 2, {s(sT1)}")
        for i in range(10): a(f"ds_read_b32 {v(GD+i)}, {v(t)} offset:{128*i}")
        a(f"s_add_u32 {s(sT1)}, {s(sT1)}, {L_S-L_G}\nv_lshl_add_u32 {v(vA)}, {v(t+1)}, 5, {s(sT1)}")
        a(f"s_lshl_b32 {s(sT0)}, {s(sT0)}, 14\ns_add_u32 {s(sT0)}, {s(sT0)}, {L_BIG}\nv_add_u32 {v(vB)}, {s(sT0)}, {v(vB)}")
        vW2 = t + 7
        a(f"v_add_u32 {v(vW2)}, 65536, {v(vB)}")
        sc = Sched()
        def ldS(u, j): sc.lds(f"ds_read_b128 {v(SF+8*(u&1)+4*j,4)}, {v(vA)} offset:{u*64+16*j}", f"S{u}_{j}")
        def xform(u):
            out = []
            sf = SF + 8 * (u & 1); hb = HB + 4 * (u & 1); g = GD + (u >> 1)
            D = "row_mask:0xf bank_mask:0xf"
            for j in (0, 2):
                x = X + 4 * u + j; n = 8 * (u & 1) + 2 * j
                out.append((f"v_lshlrev_b32 {v(t)}, 16, {v(x)}\nv_and_b32 {v(t+1)}, 0xffff0000, {v(x)}", None))
                out.append((f"v_lshlrev_b32 {v(t+2)}, 16, {v(x+1)}\nv_and_b32 {v(t+3)}, 0xffff0000, {v(x+1)}", None))
                out.append((f"v_fmac_f32_dpp {v(sf+2*j)}, {v(g)}, {v(t)} row_newbcast:{n} {D}\nv_fmac_f32_dpp {v(sf+2*j+1)}, {v(g)}, {v(t+1)} row_newbcast:{n+1} {D}", f"S{u}_{j>>1}"))
                out.append((f"v_fmac_f32_dpp {v(sf+2*j+2)}, {v(g)}, {v(t+2)} row_newbcast:{n+2} {D}\nv_fmac_f32_dpp {v(sf+2*j+3)}, {v(g)}, {v(t+3)} row_newbcast:{n+3} {D}", None))
                out.append((f"v_cvt_pk_bf16_f32 {v(hb+j)}, {v(sf+2*j)}, {v(sf+2*j+1)}", None))
                out.append((f"v_cvt_pk_bf16_f32 {v(hb+j+1)}, {v(sf+2*j+2)}, {v(sf+2*j+3)}", None))
            return out
        def emit_x(lst):
            for txt, tag in lst:
                if tag: sc.use(txt, [tag])
                else: sc.op(txt)
        def ldW1(u, T):
            gr, up = divmod(u, 4); slot = gr % 3
            off = slot * 32768 + up * 4096 + T * 1024
            va = vB
            if off >= 65536: va, off = vW2, off - 65536
            sc.lds(f"ds_read_b128 {v(WF+16*(u&1)+4*T,4)}, {v(va)} offset:{off}", f"W{u}_{T}")
        ldS(0, 0); ldS(0, 1); ldS(1, 0); ldS(1, 1)
        for T in range(4): ldW1(0, T)
        emit_x(xform(0))
        sc.op("s_nop 0")
        for u in range(20):
            nb = u + 1 < 20 and (u + 1) % 4 == 0
            xn = xform(u + 1) if u + 1 < 20 else []
            if u % 4 == 0: sc.op(f"s_setprio 2")
            if u % 4 == 2: sc.op(f"s_setprio 0")
            for T in range(4):
                c = "0" if u == 0 else v(ACC+16*T,16)
                sc.use(f"v_mfma_f32_32x32x16_bf16 {v(ACC+16*T,16)}, {v(WF+16*(u&1)+4*T,4)}, {v(HB+4*(u&1),4)}, {c}", [f"W{u}_{T}"])
                if nb and T == 0:
                    g2 = (u + 1) // 4
                    n_after = {1: 4 + side, 2: 4 + side, 3: 4, 4: 0}[g2]
                    sc.op(f"s_waitcnt vmcnt({n_after}) lgkmcnt(0)\ns_barrier\ns_setprio 3")
                if u + 1 < 20: ldW1(u + 1, T)
                emit_x(xn[3*T:3*T+3])
                if u == 18 and T == 3: sc.op("s_nop 0")
                if u + 2 < 20 and T in (1, 3): ldS(u + 2, T >> 1)
                if nb and g2 in (1, 2) and T == 3: sc.op(wdma(g2 + 2))
        sc.op("s_setprio 0")
        sc.render(a, loop=False)
        self.stamp("p1loop")
        a("s_nop 7\ns_barrier")
        a(f"s_lshl_b32 {s(sT0)}, {s(sWave)}, 13\ns_add_u32 {s(sT0)}, {s(sT0)}, {L_BIG+32768}\nv_lshl_add_u32 {v(vA)}, {v(lane)}, 4, {s(sT0)}")
        a(f"s_xor_b32 {s(sT1)}, {s(sWave)}, 4\ns_lshl_b32 {s(sT1)}, {s(sT1)}, 13\ns_add_u32 {s(sT1)}, {s(sT1)}, {L_BIG+32768}\nv_lshl_add_u32 {v(vB)}, {v(lane)}, 4, {s(sT1)}")
        a(f"s_cmp_ge_u32 {s(sWave)}, 4\ns_cbranch_scc1 Lx1")
        send0 = [8, 12, 24, 28, 48, 52, 56, 60]; send1 = [0, 4, 16, 20, 32, 36, 40, 44]
        for i, r in enumerate(send0): a(f"ds_write_b128 {v(vA)}, {v(ACC+r,4)} offset:{i*1024}")
        a("s_branch Lx2")
        a.label("Lx1")
        for i, r in enumerate(send1): a(f"ds_write_b128 {v(vA)}, {v(ACC+r,4)} offset:{i*1024}")
        for i, r in enumerate(send0):
            for j in range(4): a(f"v_mov_b32 {v(ACC+send1[i]+j)}, {v(ACC+r+j)}")
        a.label("Lx2")
        a("s_waitcnt lgkmcnt(0)\ns_barrier")
        for i in range(8): a(f"ds_read_b128 {v(X+4*i,4)}, {v(vB)} offset:{i*1024}")
        def add(i, wait):
            a(f"s_waitcnt lgkmcnt({wait})")
            for j in range(4): a(f"v_add_f32 {v(ACC+send1[i]+j)}, {v(ACC+send1[i]+j)}, {v(X+4*i+j)}")
        for i in range(8): add(i, 7 - i)
        Qv, Kv, Mv = ACC, ACC + 16, ACC + 32
        o = X + 32
        for j in range(4): a(f"v_cvt_pk_bf16_f32 {v(o+j)}, {v(Kv+2*j)}, {v(Kv+2*j+1)}")
        for j in range(4): a(f"v_cvt_pk_bf16_f32 {v(o+4+j)}, {v(Mv+2*j)}, {v(Mv+2*j+1)}")
        for j in range(2): a(f"v_cvt_pk_bf16_f32 {v(o+8+j)}, {v(Mv+8+2*j)}, {v(Mv+9+2*j)}")
        a(f"v_mov_b32 {v(o+10)}, 0x3f80\nv_mov_b32 {v(o+11)}, 0")
        a(f"s_lshl_b32 {s(sT0)}, {s(sM)}, 4\ns_add_u32 {s(sT0)}, {s(sT0)}, {s(sTb)}\ns_mul_i32 {s(sT0)}, {s(sT0)}, {SLOT}\ns_add_u32 {s(sT0)}, {s(sT0)}, {KV - L_BIG:#x}")
        a(f"s_lshr_b32 {s(sT1)}, {s(sWave)}, 2\ns_mul_i32 {s(sT1)}, {s(sT1)}, {HOFF}\ns_add_u32 {s(sT4)}, {s(sT1)}, {L_BIG}")
        a(f"s_and_b32 {s(sT1)}, {s(sWave)}, 3\ns_lshl_b32 {s(sT2)}, {s(sT1)}, 10\ns_add_u32 {s(sT2)}, {s(sT2)}, {s(sT4)}")
        a(f"s_mul_i32 {s(sT1)}, {s(sT1)}, {32*ROWB}\ns_add_u32 {s(sT1)}, {s(sT1)}, {s(sT4)}\ns_add_u32 {s(sT1)}, {s(sT1)}, 4096")
        a(f"v_and_b32 {v(t+1)}, 31, {v(lane)}\nv_mul_u32_u24 {v(t+1)}, {ROWB}, {v(t+1)}\nv_add_u32 {v(t+1)}, {s(sT1)}, {v(t+1)}")
        a(f"v_lshrrev_b32 {v(t+2)}, 5, {v(lane)}\nv_lshl_add_u32 {v(t+2)}, {v(t+2)}, 4, {v(t+1)}")
        a(f"v_lshl_add_u32 {v(t+3)}, {v(lane)}, 4, {s(sT2)}\nv_lshl_add_u32 {v(t+4)}, {v(lane)}, 4, {s(sT1)}")
        a(f"ds_write2_b64 {v(t+2)}, {v(o+4,2)}, {v(o+6,2)} offset0:0 offset1:1")
        a(f"ds_write_b64 {v(t+2)}, {v(o+8,2)} offset:32\nds_write_b64 {v(t+1)}, {v(o+10,2)} offset:40")
        a(f"ds_write_b128 {v(t+3)}, {v(o,4)}")
        a(f"buffer_store_dwordx4 {v(o,4)}, {v(t+3)}, {s(SRD,4)}, {s(sT0)} offen sc1")
        a(f"s_waitcnt lgkmcnt(1)\nds_read_b128 {v(o+20,4)}, {v(t+4)}\nds_read_b128 {v(o+24,4)}, {v(t+4)} offset:1024")
        a(f"s_waitcnt lgkmcnt(1)\nbuffer_store_dwordx4 {v(o+20,4)}, {v(t+4)}, {s(SRD,4)}, {s(sT0)} offen sc1")
        a(f"s_mov_b32 exec_hi, 0xffff\ns_waitcnt lgkmcnt(0)\nbuffer_store_dwordx4 {v(o+24,4)}, {v(t+4)}, {s(SRD,4)}, {s(sT0)} offen offset:1024 sc1\ns_mov_b64 exec, -1")
        a(f"v_lshlrev_b32 {v(t)}, 4, {v(lane)}")
        a(f"s_mov_b32 {s(sT3)}, {f2u(20**-0.5*LOG2E):#x}")
        for j in range(8): a(f"v_mul_f32 {v(Qv+j)}, {s(sT3)}, {v(Qv+j)}")
        for j in range(4): a(f"v_mul_f32 {v(Mv+12+j)}, {s(sT3)}, {v(Mv+12+j)}")
        for j in range(4): a(f"v_cvt_pk_bf16_f32 {v(o+12+j)}, {v(Qv+2*j)}, {v(Qv+2*j+1)}")
        for j in range(2): a(f"v_cvt_pk_bf16_f32 {v(o+16+j)}, {v(Mv+12+2*j)}, {v(Mv+13+2*j)}")
        a(f"s_lshl_b32 {s(sT0)}, {s(sWave)}, 10\ns_add_u32 {s(sT0)}, {s(sT0)}, {L_X}\nv_add_u32 {v(t)}, {s(sT0)}, {v(t)}")
        a(f"ds_write_b128 {v(t)}, {v(o+12,4)}")
        a(f"s_lshl_b32 {s(sT0)}, {s(sWave)}, 8\ns_add_u32 {s(sT0)}, {s(sT0)}, {L_X+8192}\nv_and_b32 {v(t+1)}, 31, {v(lane)}\nv_lshl_add_u32 {v(t+1)}, {v(t+1)}, 3, {s(sT0)}")
        a(f"ds_write_b64 {v(t+1)}, {v(o+16,2)}")
        a("s_waitcnt vmcnt(0) lgkmcnt(0)\ns_barrier")
        a(f"s_cmp_lg_u32 {s(sWave)}, 0\ns_cbranch_scc1 Lf1")
        self.flag_store(F1, sId, 128, t)
        a.label("Lf1")
        self.stamp("f1")
        R.free("X", "ACC", "GD", "WF", "SF", "HB", "vA", "vB", "vst")

    def sj1_issue(self):
        a, R = self.a, self.R
        t, lane = R["t"], R["lane"]
        U, st, cg = sT2, sT3, sT4
        a.c("side job 1: loads")
        a(f"s_lshl_b32 {s(U)}, s2, 3\ns_add_u32 {s(U)}, {s(U)}, {s(sWave)}")
        a(f"v_lshrrev_b32 {v(t)}, 3, {v(lane)}\nv_and_b32 {v(t+1)}, 7, {v(lane)}\nv_lshlrev_b32 {v(t+1)}, 4, {v(t+1)}")
        a(f"s_lshl_b32 {s(sT0)}, {s(sWave)}, 12\ns_add_u32 m0, {s(sT0)}, {L_SCR}")
        def four(pa, pb, inc):
            for i in range(4):
                if i: a(f"v_add_u32 {v(t)}, {(inc[i]-inc[i-1]) & 0xffffffff:#x}, {v(t)}\ns_add_u32 m0, m0, 1024\ns_nop 0")
                a(f"global_load_lds_dwordx4 {v(t)}, {s(pa if i < 2 else pb, 2)}")
        a(f"s_cmp_ge_u32 {s(U)}, 1080\ns_cbranch_scc1 Lsj_d")
        a(f"s_mul_i32 {s(st)}, {s(U)}, 2428\ns_lshr_b32 {s(st)}, {s(st)}, 16\ns_mul_i32 {s(sT0)}, {s(st)}, 27\ns_sub_u32 {s(cg)}, {s(U)}, {s(sT0)}")
        a(f"s_mul_i32 {s(sT0)}, {s(st)}, {16*3456}\ns_lshl_b32 {s(sT1)}, {s(cg)}, 7\ns_add_u32 {s(sT0)}, {s(sT0)}, {s(sT1)}")
        a(f"v_mul_u32_u24 {v(t)}, 3456, {v(t)}\nv_add3_u32 {v(t)}, {v(t)}, {v(t+1)}, {s(sT0)}")
        four(P_WG, P_WU, (0, 8*3456, 0, 8*3456))
        a(f"s_mul_i32 {s(sJd)}, {s(cg)}, 160\ns_add_u32 {s(sJd)}, {s(sJd)}, {s(st)}\ns_lshl_b32 {s(sJd)}, {s(sJd)}, 10\ns_add_u32 {s(sJd)}, {s(sJd)}, {WGF:#x}")
        a(f"s_mov_b32 {s(sJs)}, 40960\ns_mov_b32 {s(sJt)}, 0\ns_branch Lsj_e")
        a.label("Lsj_d")
        a(f"s_cmp_ge_u32 {s(U)}, 1620\ns_cbranch_scc1 Lsj_o")
        a(f"s_sub_u32 {s(U)}, {s(U)}, 1080\ns_mul_i32 {s(st)}, {s(U)}, 6554\ns_lshr_b32 {s(st)}, {s(st)}, 16\ns_mul_i32 {s(sT0)}, {s(st)}, 10\ns_sub_u32 {s(cg)}, {s(U)}, {s(sT0)}")
        a(f"s_mul_i32 {s(sT0)}, {s(st)}, {32*1280}\ns_lshl_b32 {s(sT1)}, {s(cg)}, 7\ns_add_u32 {s(sT0)}, {s(sT0)}, {s(sT1)}")
        a(f"v_mul_u32_u24 {v(t)}, 1280, {v(t)}\nv_add3_u32 {v(t)}, {v(t)}, {v(t+1)}, {s(sT0)}")
        four(P_WD, P_WD, (0, 10240, 20480, 30720))
        a(f"s_mul_i32 {s(sJd)}, {s(cg)}, 216\ns_add_u32 {s(sJd)}, {s(sJd)}, {s(st)}\ns_lshl_b32 {s(sJd)}, {s(sJd)}, 10\ns_add_u32 {s(sJd)}, {s(sJd)}, {WDF:#x}")
        a(f"s_mov_b32 {s(sJs)}, 55296\ns_mov_b32 {s(sJt)}, 1\ns_branch Lsj_e")
        a.label("Lsj_o")
        a(f"s_cmp_ge_u32 {s(U)}, 1820\ns_cselect_b32 {s(sJt)}, 2, 1\ns_min_u32 {s(U)}, {s(U)}, 1819")
        a(f"s_sub_u32 {s(U)}, {s(U)}, 1620\ns_mul_i32 {s(st)}, {s(U)}, 6554\ns_lshr_b32 {s(st)}, {s(st)}, 16\ns_mul_i32 {s(sT0)}, {s(st)}, 10\ns_sub_u32 {s(cg)}, {s(U)}, {s(sT0)}")
        a(f"s_mul_i32 {s(sJd)}, {s(cg)}, 80\ns_add_u32 {s(sJd)}, {s(sJd)}, {s(st)}\ns_lshl_b32 {s(sJd)}, {s(sJd)}, 10\ns_add_u32 {s(sJd)}, {s(sJd)}, {WOF:#x}")
        a(f"s_mov_b32 {s(sJs)}, 20480\ns_lshl_b32 {s(sT1)}, {s(cg)}, 7\ns_cmp_ge_u32 {s(st)}, 16\ns_cbranch_scc1 Lsj_r")
        a(f"s_mul_i32 {s(sT0)}, {s(st)}, {40*1280}\ns_add_u32 {s(sT0)}, {s(sT0)}, {s(sT1)}")
        a(f"v_mul_u32_u24 {v(t)}, 1280, {v(t)}\nv_add3_u32 {v(t)}, {v(t)}, {v(t+1)}, {s(sT0)}")
        four(P_WO, P_WO, (0, 8*1280, 20*1280, 28*1280))
        a("s_branch Lsj_e")
        a.label("Lsj_r")
        a(f"s_sub_u32 {s(st)}, {s(st)}, 16\ns_mul_i32 {s(sT0)}, {s(st)}, {160*1280}\ns_add_u32 {s(sT0)}, {s(sT0)}, {16*1280}\ns_add_u32 {s(sT0)}, {s(sT0)}, {s(sT1)}")
        a(f"v_and_b32 {v(t)}, 3, {v(t)}\nv_lshrrev_b32 {v(t+2)}, 5, {v(lane)}\nv_mul_u32_u24 {v(t+2)}, 20, {v(t+2)}\nv_add_u32 {v(t)}, {v(t)}, {v(t+2)}")
        a(f"v_mul_u32_u24 {v(t)}, 1280, {v(t)}\nv_add3_u32 {v(t)}, {v(t)}, {v(t+1)}, {s(sT0)}")
        four(P_WO, P_WO, (0, 40*1280, 80*1280, 120*1280))
        a.label("Lsj_e")
        a(f"s_min_u32 {s(sT2)}, s2, 199\ns_mul_i32 {s(sT3)}, {s(sT2)}, 1639\ns_lshr_b32 {s(sT3)}, {s(sT3)}, 16\ns_mul_i32 {s(sT0)}, {s(sT3)}, 40\ns_sub_u32 {s(sT2)}, {s(sT2)}, {s(sT0)}")
        a(f"s_mul_i32 {s(sG2)}, {s(sT3)}, 10240\ns_lshl_b32 {s(sT0)}, {s(sT2)}, 8\ns_add_u32 {s(sG2)}, {s(sG2)}, {s(sT0)}\ns_add_u32 {s(sG2)}, {s(sG2)}, {MP2:#x}")
        a(f"s_lshl_b32 {s(sT2)}, {s(sT2)}, 7\ns_add_u32 {s(sT2)}, {s(sT2)}, 2560")
        self.gemv_issue(sT2, sT3, R["gW"], R["gC"], t, 2)
        return 8
    def sj1_work(self, tmp):
        a, R = self.a, self.R
        t, lane = R["t"], R["lane"]
        a.c("side job 1: transpose + publish")
        a(f"s_cmp_eq_u32 {s(sJt)}, 2\ns_cbranch_scc1 Lsw_e")
        a(f"v_bfe_u32 {v(t)}, {v(lane)}, 4, 1\nv_lshrrev_b32 {v(t+1)}, 5, {v(lane)}\ns_cmp_eq_u32 {s(sJt)}, 0\ns_cselect_b32 {s(sT0)}, 4, 2\ns_cselect_b32 {s(sT1)}, 2, 4")
        a(f"v_lshlrev_b32 {v(t)}, {s(sT0)}, {v(t)}\nv_lshlrev_b32 {v(t+1)}, {s(sT1)}, {v(t+1)}\nv_bfe_u32 {v(t+2)}, {v(lane)}, 2, 2\nv_add3_u32 {v(t)}, {v(t)}, {v(t+1)}, {v(t+2)}")
        a(f"s_lshl_b32 {s(sT0)}, {s(sWave)}, 12\ns_add_u32 {s(sT0)}, {s(sT0)}, {L_SCR}\nv_lshl_add_u32 {v(t)}, {v(t)}, 7, {s(sT0)}")
        a(f"v_and_b32 {v(t+1)}, 3, {v(lane)}\nv_lshl_add_u32 {v(t)}, {v(t+1)}, 3, {v(t)}")
        for T in range(4):
            for jj in range(2): a(f"ds_read_b64_tr_b16 {v(tmp+4*T+2*jj,2)}, {v(t)} offset:{T*32 + jj*1024}")
        a(f"v_lshlrev_b32 {v(t+1)}, 4, {v(lane)}")
        for T in range(4):
            a(f"s_waitcnt lgkmcnt({6-2*T})\nbuffer_store_dwordx4 {v(tmp+4*T,4)}, {v(t+1)}, {s(SRD,4)}, {s(sJd)} offen sc1")
            if T < 3: a(f"s_add_u32 {s(sJd)}, {s(sJd)}, {s(sJs)}")
        a.label("Lsw_e")
        self.gemv_math(R["gW"], R["gC"], tmp + 16, t, 2)
    def last_arriver(self, off, n, label):
        a, R = self.a, self.R; t = R["t"]
        a(f"v_mov_b32 {v(t)}, 1\nv_mov_b32 {v(t+1)}, {off}\ns_waitcnt lgkmcnt(0)\ns_mov_b64 exec, 1")
        a(f"ds_add_rtn_u32 {v(t)}, {v(t+1)}, {v(t)}\ns_waitcnt lgkmcnt(0)\ns_mov_b64 exec, -1\nv_readfirstlane_b32 {s(sT3)}, {v(t)}")
        a(f"s_cmp_lg_u32 {s(sT3)}, {n-1}\ns_cbranch_scc1 {label}")
    def poll16(self, base, which, label, minval=None, extra=None):
        a, R = self.a, self.R; lane = R["lane"]; p = 132
        a(f"v_and_b32 {v(p)}, 15, {v(lane)}")
        if which == "row": a(f"s_lshl_b32 {s(sT0)}, {s(sTb)}, 11\nv_lshlrev_b32 {v(p)}, 7, {v(p)}")
        else: a(f"s_lshl_b32 {s(sT0)}, {s(sM)}, 7\nv_lshlrev_b32 {v(p)}, 11, {v(p)}")
        a(f"s_add_u32 {s(sT0)}, {s(sT0)}, {base:#x}\nv_add_u32 {v(p)}, {s(sT0)}, {v(p)}")
        if extra: extra(p)
        if minval is None:
            cmp = lambda: a(f"v_cmp_ne_u32 vcc, {s(sN)}, {v(p+1)}")
        else:
            cmp = lambda: a(f"v_subrev_u32 {v(p+1)}, {s(sN)}, {v(p+1)}\nv_subrev_u32 {v(p+1)}, {minval}, {v(p+1)}\nv_cmp_lt_u32 vcc, {7-minval}, {v(p+1)}")
        self.poll([(p, p + 1)], cmp, label)

    def pin_list(self, fp):
        nf = 3 - fp
        wo = [("o", f, i) for i in range(5) for f in range(nf)]
        wd = [("d", f, j) for j in range(14) for f in range(nf)]
        return wo, wd
    def wo_off(self, fp, f, i):
        return ((3 * fp + f) * 20 + (4 * i if i < 4 else 16)) * 1024
    def wd_off(self, fp, f, j):
        return ((3 * fp + f) * 54 + 8 * (j >> 1) + (j & 1)) * 1024

    def p2(self):
        a, R = self.a, self.R
        t, lane = R["t"], R["lane"]
        S = S_AT
        R.alloc("Qr", 2, at=10); R.alloc("Qm", 8, at=12); R.alloc("SA", 32, at=20); R.alloc("SB", 32, at=52); R.alloc("O", 32, at=84)
        R.alloc("Km", 4, at=116); R.alloc("V", 8, at=120); R.alloc("KR", 4, at=128)
        self.sj1_work(PIN)
        for n, r in (("vK", t + 2), ("vR", t + 3), ("vV", t + 4), ("vDma", t + 5), ("vM", t + 6), ("vT0", 134)): R.names[n] = (r, 1)
        a(f"s_lshr_b32 {s(sT0)}, {s(sWave)}, 2\ns_mul_i32 {s(S['sHH'])}, {s(sT0)}, {HOFF}\ns_add_u32 {s(S['sHH'])}, {s(S['sHH'])}, {L_BIG}")
        a(f"s_bfe_u32 {s(S['sKH'])}, {s(sWave)}, 0x10001\ns_mul_i32 {s(S['sKV'])}, {s(sM)}, {16*SLOT}\ns_add_u32 {s(S['sKV'])}, {s(S['sKV'])}, {KV:#x}")
        a(f"s_and_b32 {s(sT1)}, {s(sWave)}, 1\ns_lshl_b32 {s(sT1)}, {s(sT1)}, 1\ns_lshl_b32 {s(sT0)}, {s(sT0)}, 2\ns_add_u32 {s(sT0)}, {s(sT0)}, {s(sT1)}")
        a(f"s_lshl_b32 {s(sT1)}, {s(sT0)}, 10\ns_add_u32 {s(sT1)}, {s(sT1)}, {L_X}\nv_lshl_add_u32 {v(132)}, {v(lane)}, 4, {s(sT1)}")
        a(f"s_lshl_b32 {s(sT1)}, {s(sT0)}, 8\ns_add_u32 {s(sT1)}, {s(sT1)}, {L_X+8192}\nv_lshl_add_u32 {v(133)}, {v(lane)}, 3, {s(sT1)}")
        a(f"ds_read_b128 {v(R['Qm'],4)}, v132\nds_read_b128 {v(R['Qm']+4,4)}, v132 offset:1024\nds_read_b64 {v(R['Qr'],2)}, v133")
        attn.attn_setup(a, R, S, L_BIG)
        a(attn.dma_skip(S))
        a(f"s_cmp_lg_u32 {s(sWave)}, 0\ns_cbranch_scc1 Lq1")
        self.poll16(F1, "col", "1")
        a.label("Lq1")
        a("s_barrier")
        self.stamp("f1seen")
        a(attn.dma_chunk(R, S, SRD))
        a("s_waitcnt vmcnt(3)")
        self.last_arriver(L_BAD + 8, 8, "Lq2")
        a(f"s_cmp_ge_u32 s2, 200\ns_cbranch_scc1 Lq3")
        self.gemv_final(sG2, PIN, t, 8)
        a.label("Lq3")
        a("s_waitcnt vmcnt(0)")
        self.flag_store(FR, 2, 4, t)
        a.label("Lq2")
        attn.attn_head(a, R)
        NROLL = 4
        attn.attn_loop(a, R, S, SRD, "fast", NROLL)
        a(f"s_and_b32 {s(sT0)}, {s(sM)}, 7\ns_and_b32 {s(sT1)}, {s(sWave)}, 3\ns_mul_i32 {s(sA)}, {s(sT0)}, 100\ns_add_u32 {s(sA)}, {s(sA)}, {s(sT1)}\ns_lshl_b32 {s(sA)}, {s(sA)}, 10\ns_add_u32 {s(sA)}, {s(sA)}, {WOF:#x}")
        a(f"s_mul_i32 {s(sB)}, {s(sT0)}, 270\ns_lshl_b32 {s(sT1)}, {s(sT1)}, 1\ns_add_u32 {s(sB)}, {s(sB)}, {s(sT1)}\ns_lshl_b32 {s(sB)}, {s(sB)}, 10\ns_add_u32 {s(sB)}, {s(sB)}, {WDF:#x}")
        a(f"s_sub_u32 {s(sC_)}, {s(sB)}, {s(sA)}\ns_lshr_b32 {s(sD)}, {s(sWave)}, 2\ns_mov_b32 {s(sT5)}, {FR:#x}")
        vD = R["vDma"]
        attn.attn_trip(a, R, S, SRD, "fast", [f"buffer_load_dwordx4 {v(PIN,4)}, {v(vD)}, {s(SRD,4)}, {s(sT5)} offen sc1"])
        L1, L2 = "Lfr1", "Lfr2"
        a(f"s_mov_b32 {s(sPoll)}, {POLL_MAX}\ns_waitcnt vmcnt(3)")
        a.label(L1)
        for j in range(4): a(f"v_xor_b32 {v(PIN+j)}, {s(sN)}, {v(PIN+j)}")
        a(f"v_or3_b32 {v(PIN)}, {v(PIN)}, {v(PIN+1)}, {v(PIN+2)}\nv_or_b32 {v(PIN)}, {v(PIN)}, {v(PIN+3)}\nv_cmp_ne_u32 vcc, 0, {v(PIN)}\ns_cbranch_vccz {L2}")
        a(f"buffer_load_dwordx4 {v(PIN,4)}, {v(vD)}, {s(SRD,4)}, {s(sT5)} offen sc1\ns_waitcnt vmcnt(0)")
        a(f"s_sub_u32 {s(sPoll)}, {s(sPoll)}, 1\ns_cmp_gt_i32 {s(sPoll)}, 0\ns_cbranch_scc1 {L1}")
        a.label(L2)
        loads = []
        for n in range(30):
            offs = []
            for fp in range(2):
                wo, wd = self.pin_list(fp)
                if n < len(wo): offs.append((0, self.wo_off(fp, *wo[n][1:])))
                else: offs.append((1, self.wd_off(fp, *wd[n - 10][1:])))
            txt = f"s_cmp_lg_u32 {s(sD)}, 0\ns_mov_b32 {s(sT4)}, {offs[0][1]:#x}\ns_cmov_b32 {s(sT4)}, {offs[1][1]:#x}\n"
            if offs[0][0] != offs[1][0]: txt += f"s_cselect_b32 {s(sT3)}, {s(sB)}, {s(sA)}\ns_add_u32 {s(sT4)}, {s(sT4)}, {s(sT3)}\n"
            else: txt += f"s_add_u32 {s(sT4)}, {s(sT4)}, {s(sB if offs[0][0] else sA)}\n"
            txt += f"buffer_load_dwordx4 {v(PIN+4*n,4)}, {v(vD)}, {s(SRD,4)}, {s(sT4)} offen sc1"
            loads.append(txt)
        for c in range(NROLL + 1, 16):
            k = c - NROLL - 1
            attn.attn_trip(a, R, S, SRD, "fast", loads[3*k:3*k+3], dodma=(c + 2 < 16))
        attn.attn_tail(a, R, "fast")
        self.stamp("attn")
        self.p2_finish(first=True)
        a.label("Lo_done")
        a(f"s_cmp_lg_u32 {s(sWave)}, 0\ns_cbranch_scc1 Lf2")
        self.flag_store(F2, sId, 128, 132)
        a.label("Lf2")
        self.stamp("f2")
        for n in ("vK", "vR", "vV", "vDma", "vM", "vT0"): del R.names[n]
        R.free("Qr", "Qm", "SA", "SB", "O", "Km", "V", "KR", "gW", "gC")
        R.alloc("PINW", 80, at=PIN + 40)

    def p2_finish(self, first):
        a, R = self.a, self.R
        lane = R["lane"]; O = R["O"]; SA = R["SA"]; u = 132
        sfx = "a" if first else "b"
        a(f"s_mul_i32 {s(sT0)}, {s(sWave)}, 3072\ns_add_u32 {s(sT0)}, {s(sT0)}, {L_OX}\nv_lshl_add_u32 {v(u)}, {v(lane)}, 4, {s(sT0)}")
        a(f"s_xor_b32 {s(sT1)}, {s(sWave)}, 2\ns_mul_i32 {s(sT1)}, {s(sT1)}, 3072\ns_add_u32 {s(sT1)}, {s(sT1)}, {L_OX}\nv_lshl_add_u32 {v(u+1)}, {v(lane)}, 4, {s(sT1)}")
        a(f"s_nop 6\ns_cmp_lg_u32 {s(S_AT['sKH'])}, 0\ns_cbranch_scc1 Lox1{sfx}")
        for i in range(3): a(f"ds_write_b128 {v(u)}, {v(O+16+4*i,4)} offset:{i*1024}")
        a(f"s_branch Lox2{sfx}")
        a.label(f"Lox1{sfx}")
        for i in range(3): a(f"ds_write_b128 {v(u)}, {v(O+4*i,4)} offset:{i*1024}")
        for i in range(12): a(f"v_mov_b32 {v(O+i)}, {v(O+16+i)}")
        a.label(f"Lox2{sfx}")
        a("s_waitcnt lgkmcnt(0)\ns_barrier")
        for i in range(3): a(f"ds_read_b128 {v(SA+4*i,4)}, {v(u+1)} offset:{i*1024}")
        a(f"s_and_b32 {s(sT0)}, {s(sWave)}, 1\ns_lshl_b32 {s(sT0)}, {s(sT0)}, 1\ns_add_u32 {s(sT0)}, {s(sT0)}, {s(S_AT['sKH'])}\ns_lshl_b32 {s(sT1)}, {s(sTb)}, 2\ns_add_u32 {s(sT0)}, {s(sT0)}, {s(sT1)}")
        a(f"s_mul_i32 {s(sT0)}, {s(sT0)}, 40960\ns_add_u32 {s(sT0)}, {s(sT0)}, {OF:#x}")
        a(f"s_lshr_b32 {s(sT1)}, {s(sWave)}, 2\ns_lshl_b32 {s(sT2)}, {s(sM)}, 1\ns_add_u32 {s(sT1)}, {s(sT1)}, {s(sT2)}")
        a(f"s_lshl_b32 {s(sT2)}, {s(sT1)}, 10\ns_add_u32 {s(sT2)}, {s(sT2)}, {s(sT0)}\ns_lshl_b32 {s(sT1)}, {s(sT1)}, 8\ns_add_u32 {s(sT1)}, {s(sT1)}, {s(sT0)}\ns_add_u32 {s(sT1)}, {s(sT1)}, 32768")
        a("s_waitcnt lgkmcnt(0)")
        for i in range(12): a(f"v_add_f32 {v(O+i)}, {v(O+i)}, {v(SA+i)}")
        l = SA + 12
        a(f"v_mov_b32 {v(l)}, {v(O+8)}\nv_mov_b32 {v(l+1)}, {v(O+8)}\ns_nop 1\nv_permlane32_swap_b32 {v(l)}, {v(l+1)}")
        a(f"v_rcp_f32 {v(l)}, {v(l+1)}\ns_nop 0")
        for i in range(12): a(f"v_mul_f32 {v(O+i)}, {v(O+i)}, {v(l)}")
        for j in range(6): a(f"v_cvt_pk_bf16_f32 {v(SA+j)}, {v(O+2*j)}, {v(O+2*j+1)}")
        a(f"v_lshlrev_b32 {v(u)}, 4, {v(lane)}\nv_lshlrev_b32 {v(u+1)}, 3, {v(lane)}")
        a(f"buffer_store_dwordx4 {v(SA,4)}, {v(u)}, {s(SRD,4)}, {s(sT2)} offen sc1")
        a(f"s_mov_b32 exec_hi, 0\nbuffer_store_dwordx2 {v(SA+4,2)}, {v(u+1)}, {s(SRD,4)}, {s(sT1)} offen sc1\ns_mov_b32 exec_hi, -1")
        if first:
            for i in range(1, 12): a(f"v_add_f32 {v(O)}, {v(O)}, {v(O+i)}")
            a(f"v_mov_b32 {v(u)}, 0x5f800000\nv_cmp_nle_f32 vcc, {v(l+1)}, {v(u)}\nv_mov_b32 {v(u)}, 0x1f800000\nv_cmp_nge_f32 s[40:41], {v(l+1)}, {v(u)}\ns_or_b64 vcc, vcc, s[40:41]")
            a(f"v_mov_b32 {v(u)}, 0x207\nv_cmp_class_f32 s[40:41], {v(O)}, {v(u)}\ns_or_b64 vcc, vcc, s[40:41]\ns_cbranch_vccz Lokay")
            a(f"v_mov_b32 {v(u)}, 1\nv_mov_b32 {v(u+1)}, {L_BAD}\nds_write_b32 {v(u+1)}, {v(u)}")
            a.label("Lokay")
            a(f"s_waitcnt vmcnt(0) lgkmcnt(0)\ns_barrier\nv_mov_b32 {v(u+1)}, {L_BAD}\nds_read_b32 {v(u)}, {v(u+1)}\ns_waitcnt lgkmcnt(0)\nv_readfirstlane_b32 {s(sT0)}, {v(u)}")
            a(f"s_cmp_lg_u32 {s(sT0)}, 0\ns_cbranch_scc1 Lslow")
        else:
            a("s_waitcnt vmcnt(0)\ns_barrier\ns_branch Lo_done")

    def slow_path(self, regs):
        a, R = self.a, self.R
        old = dict(R.names); R.names.update(regs)
        S = S_AT; vM = R["vM"]; lane = R["lane"]
        a.label("Lslow")
        for mode in ("max", "sub"):
            attn.attn_setup(a, R, S, L_BIG)
            a(attn.dma_chunk(R, S, SRD)); a(attn.dma_chunk(R, S, SRD))
            if mode == "max": a(f"v_mov_b32 {v(vM)}, 0xff7fffff\nv_mov_b32 {v(vM+1)}, 0xff7fffff")
            a("s_waitcnt vmcnt(3)\ns_barrier")
            attn.attn_head(a, R)
            attn.attn_loop(a, R, S, SRD, mode, 16)
            attn.attn_tail(a, R, mode)
            a("s_waitcnt vmcnt(0)")
            if mode == "max":
                u = 132
                a(f"v_mov_b32 {v(u)}, {v(vM)}\nv_mov_b32 {v(u+1)}, {v(vM+1)}\ns_nop 1\nv_permlane32_swap_b32 {v(u)}, {v(vM)}\nv_permlane32_swap_b32 {v(u+1)}, {v(vM+1)}")
                a(f"v_max_f32 {v(vM)}, {v(vM)}, {v(u)}\nv_max_f32 {v(vM+1)}, {v(vM+1)}, {v(u+1)}")
                a(f"s_lshl_b32 {s(sT0)}, {s(sWave)}, 9\ns_add_u32 {s(sT0)}, {s(sT0)}, {L_OX}\nv_lshl_add_u32 {v(u)}, {v(lane)}, 3, {s(sT0)}")
                a(f"ds_write_b64 {v(u)}, {v(vM,2)}\nv_xor_b32 {v(u)}, 1024, {v(u)}\ns_waitcnt lgkmcnt(0)\ns_barrier")
                a(f"ds_read_b64 {v(u,2)}, {v(u)}\ns_waitcnt lgkmcnt(0)\nv_max_f32 {v(vM)}, {v(vM)}, {v(u)}\nv_max_f32 {v(vM+1)}, {v(vM+1)}, {v(u+1)}")
                a("s_barrier")
        self.p2_finish(first=False)
        R.names.clear(); R.names.update(old)

    def tok_addr(self, dst, base, ttstride, qblocks, rem=None):
        a, R = self.a, self.R; lane = R["lane"]; t = R["t"]
        a(f"v_lshrrev_b32 {v(t)}, 5, {v(lane)}\nv_lshlrev_b32 {v(t)}, 10, {v(t)}\nv_bfe_u32 {v(t+1)}, {v(lane)}, 4, 1\nv_and_b32 {v(t+2)}, 15, {v(lane)}")
        if rem is not None:
            a(f"v_lshl_add_u32 {v(t+3)}, {v(t+1)}, 8, {v(t)}\nv_lshl_add_u32 {v(t+3)}, {v(t+2)}, 3, {v(t+3)}")
        a(f"v_lshl_add_u32 {v(t)}, {v(t+1)}, 9, {v(t)}\nv_lshl_add_u32 {v(t)}, {v(t+2)}, 4, {v(t)}")
        a(f"s_and_b32 {s(sT0)}, {s(sWave)}, 3\ns_mul_i32 {s(sT1)}, {s(sT0)}, {qblocks*1024}\ns_add_u32 {s(sT1)}, {s(sT1)}, {base}")
        for i in range(4):
            a(f"s_add_u32 {s(sT2)}, {s(sT0)}, {i}\ns_bfe_u32 {s(sT3)}, {s(sT2)}, 0x10001\ns_mul_i32 {s(sT3)}, {s(sT3)}, {ttstride}\ns_add_u32 {s(sT3)}, {s(sT3)}, {s(sT1)}\ns_and_b32 {s(sT2)}, {s(sT2)}, 1")
            a(f"s_lshl_b32 {s(sT4)}, {s(sT2)}, 8\ns_add_u32 {s(sT4)}, {s(sT4)}, {s(sT3)}\nv_add_u32 {v(dst+i)}, {s(sT4)}, {v(t)}")
            if rem is not None:
                a(f"s_lshl_b32 {s(sT4)}, {s(sT2)}, 7\ns_add_u32 {s(sT4)}, {s(sT4)}, {s(sT3)}\ns_add_u32 {s(sT4)}, {s(sT4)}, 32768\nv_add_u32 {v(rem+i)}, {s(sT4)}, {v(t+3)}")
    def reduce4(self, fp, ACC, tmp, va):
        a, R = self.a, self.R; lane = R["lane"]; nf = 3 - fp
        a(f"s_and_b32 {s(sT0)}, {s(sWave)}, 3")
        for i in range(4):
            slot = (3 - i) if i else 0
            a(f"s_add_u32 {s(sT1)}, {s(sT0)}, {i}\ns_and_b32 {s(sT1)}, {s(sT1)}, 3\ns_mul_i32 {s(sT1)}, {s(sT1)}, 3072\ns_add_u32 {s(sT1)}, {s(sT1)}, {L_PL + 3*fp*12288 + slot*1024}")
            a(f"v_lshl_add_u32 {v(va+i)}, {v(lane)}, 4, {s(sT1)}")
        for f in range(nf):
            for i in range(1, 4): a(f"ds_write_b128 {v(va+i)}, {v(ACC+(f*4+i)*4,4)} offset:{f*12288}")
        a("s_waitcnt lgkmcnt(0)\ns_barrier")
        for f in range(nf):
            for k in range(3): a(f"ds_read_b128 {v(tmp+(f*3+k)*4,4)}, {v(va)} offset:{f*12288 + k*1024}")
        for f in range(nf):
            a(f"s_waitcnt lgkmcnt({3*(nf-1-f)})")
            for j in range(4):
                d = ACC + f * 16 + j; x = tmp + f * 12 + j
                a(f"v_add_f32 {v(x)}, {v(x)}, {v(x+4)}\nv_add_f32 {v(d)}, {v(d)}, {v(x+8)}\nv_add_f32 {v(d)}, {v(d)}, {v(x)}")
    def row_col(self, dst, ptrcol):
        a, R = self.a, self.R; lane = R["lane"]; t = R["t"]
        a(f"s_lshl_b32 {s(sT0)}, {s(sTb)}, 7\ns_lshr_b32 {s(sT1)}, {s(sM)}, 3\ns_lshl_b32 {s(sT1)}, {s(sT1)}, 6\ns_add_u32 {s(sT0)}, {s(sT0)}, {s(sT1)}")
        a(f"s_and_b32 {s(sT1)}, {s(sWave)}, 3\ns_lshl_b32 {s(sT1)}, {s(sT1)}, 4\ns_add_u32 {s(sT0)}, {s(sT0)}, {s(sT1)}\ns_mul_i32 {s(sT0)}, {s(sT0)}, 1280")
        a(f"s_and_b32 {s(sT1)}, {s(sM)}, 7\ns_mul_i32 {s(sT1)}, {s(sT1)}, 160\ns_add_u32 {s(sT0)}, {s(sT0)}, {s(sT1)}\ns_lshr_b32 {s(sT1)}, {s(sWave)}, 2\ns_mul_i32 {s(sT1)}, {s(sT1)}, 96\ns_add_u32 {s(sT0)}, {s(sT0)}, {s(sT1)}")
        a(f"v_and_b32 {v(t)}, 15, {v(lane)}\nv_mul_u32_u24 {v(t)}, 1280, {v(t)}\nv_lshrrev_b32 {v(t+1)}, 4, {v(lane)}\nv_lshl_add_u32 {v(t)}, {v(t+1)}, 3, {v(t)}\nv_add_u32 {v(dst)}, {s(sT0)}, {v(t)}")

    def p3(self):
        a, R = self.a, self.R
        t, lane = R["t"], R["lane"]
        X1 = R.alloc("X1", 6, at=10)
        ACC = R.alloc("ACC", 48, at=16); TOK = R.alloc("TOK", 32, at=64); PT = R.alloc("PT", 20, at=96)
        vT = R.alloc("vT", 4, at=116); vRm = R.alloc("vRm", 4, at=120); vD = R.alloc("vD", at=135); vA = R.alloc("vA", at=125)
        UF = ACC
        a.c("window: tables, residual, u/v job")
        a(f"s_and_b32 {s(sT0)}, {s(sM)}, 7\ns_mul_i32 {s(sT0)}, {s(sT0)}, 320\ns_sub_u32 {s(sT1)}, {s(sT0)}, {320*16}\ns_add_u32 {s(sT2)}, {s(sT0)}, {7680-340*16}")
        a(f"v_mov_b32 {v(t)}, 2560\nv_mov_b32 {v(t+1)}, {s(sT1)}\nv_cmp_le_u32 vcc, 320, v0\nv_mov_b32 {v(t+2)}, {s(sT2)}\ns_nop 0\nv_cndmask_b32 {v(t)}, {v(t)}, {v(t+1)}, vcc")
        a(f"v_cmp_le_u32 vcc, 340, v0\ns_nop 1\nv_cndmask_b32 {v(t)}, {v(t)}, {v(t+2)}, vcc\nv_lshl_add_u32 {v(vA)}, v0, 4, {v(t)}")
        a(f"v_cmp_gt_u32 vcc, 360, v0\ns_and_saveexec_b64 {s(sEx,2)}, vcc\ns_cbranch_execz Lt1")
        a(f"s_mov_b32 {s(sT0)}, {MP2:#x}")
        for i in range(5):
            a(f"buffer_load_dwordx4 {v(PT+4*i,4)}, {v(vA)}, {s(SRD,4)}, {s(sT0)} offen sc1")
            if i < 4: a(f"s_add_u32 {s(sT0)}, {s(sT0)}, 10240")
        a.label("Lt1")
        a(f"s_mov_b64 exec, {s(sEx,2)}")
        a(f"v_lshlrev_b32 {v(vD)}, 4, {v(lane)}")
        a(f"s_cmp_ge_u32 s2, 108\ns_cbranch_scc1 Lu1")
        a(f"s_mul_i32 {s(sT0)}, s2, 40\ns_mul_i32 {s(sT1)}, {s(sWave)}, 5\ns_add_u32 {s(sT0)}, {s(sT0)}, {s(sT1)}\ns_lshl_b32 {s(sT0)}, {s(sT0)}, 10\ns_add_u32 {s(sT0)}, {s(sT0)}, {WGF:#x}")
        for i in range(4): a(f"buffer_load_dwordx4 {v(UF+4*i,4)}, {v(vD)}, {s(SRD,4)}, {s(sT0)} offen offset:{i*1024} sc1")
        a(f"s_add_u32 {s(sT0)}, {s(sT0)}, 4096\nbuffer_load_dwordx4 {v(UF+16,4)}, {v(vD)}, {s(SRD,4)}, {s(sT0)} offen sc1")
        a.label("Lu1")
        self.row_col(vA, None)
        a(f"s_cmp_ge_u32 {s(sWave)}, 4\ns_cbranch_scc1 Lx3\nglobal_load_dwordx2 {v(X1+4,2)}, {v(vA)}, {s(P_X,2)} offset:64")
        a.label("Lx3")
        for f in range(2): a(f"global_load_dwordx2 {v(X1+2*f,2)}, {v(vA)}, {s(P_X,2)} offset:{f*32}")
        self.tok_addr(vT, L_BIG, 40960, 2, rem=vRm)
        a(f"v_cmp_gt_u32 vcc, 360, v0\ns_and_saveexec_b64 {s(sEx,2)}, vcc\ns_cbranch_execz Lt2")
        a("s_waitcnt vmcnt(2)")
        for j in range(4):
            a(f"v_add_f32 {v(PT+j)}, {v(PT+j)}, {v(PT+4+j)}\nv_add_f32 {v(PT+8+j)}, {v(PT+8+j)}, {v(PT+12+j)}")
            a(f"v_add_f32 {v(PT+j)}, {v(PT+j)}, {v(PT+16+j)}\nv_add_f32 {v(PT+j)}, {v(PT+j)}, {v(PT+8+j)}")
        a(f"v_subrev_u32 {v(t+3)}, 160, v0\nv_cmp_gt_u32 vcc, 160, {v(t+3)}\nv_mov_b32 {v(t+2)}, 1.0\ns_nop 0\nv_cndmask_b32 {v(t+2)}, 0, {v(t+2)}, vcc")
        for j in (0, 2):
            o = PT + 4 + (j >> 1)
            a(f"v_cvt_pk_bf16_f32 {v(t)}, {v(PT+j)}, {v(PT+j+1)}\nv_lshlrev_b32 {v(PT+j)}, 16, {v(t)}\nv_and_b32 {v(PT+j+1)}, 0xffff0000, {v(t)}")
            a(f"v_add_f32 {v(PT+j)}, {v(PT+j)}, {v(t+2)}\nv_add_f32 {v(PT+j+1)}, {v(PT+j+1)}, {v(t+2)}")
            a(f"v_cvt_pk_bf16_f32 {v(o)}, {v(PT+j)}, {v(PT+j+1)}\nv_lshlrev_b32 {v(PT+j)}, 16, {v(o)}\nv_and_b32 {v(PT+j+1)}, 0xffff0000, {v(o)}")
        a(f"v_cndmask_b32 {v(t)}, v0, {v(t+3)}, vcc\nv_mov_b32 {v(t+1)}, {L_SB}\nv_cndmask_b32 {v(t+1)}, {v(t+1)}, {L_GB}, vcc".replace(f"v_cndmask_b32 {v(t+1)}, {v(t+1)}, {L_GB}, vcc", f"v_cndmask_b32 {v(t+1)}, {v(t+1)}, 0, vcc"))
        a(f"v_lshrrev_b32 {v(t+2)}, 2, {v(t)}\nv_lshl_add_u32 {v(t+1)}, {v(t+2)}, 5, {v(t+1)}\nv_and_b32 {v(t+2)}, 1, {v(t)}\nv_lshl_add_u32 {v(t+1)}, {v(t+2)}, 4, {v(t+1)}")
        a(f"v_bfe_u32 {v(t+2)}, {v(t)}, 1, 1\nv_lshl_add_u32 {v(t+1)}, {v(t+2)}, 3, {v(t+1)}")
        a(f"s_mov_b64 s[40:41], exec\nv_cmp_gt_u32 vcc, 320, v0\ns_and_b64 exec, exec, vcc\ns_cbranch_execz Lt3\nds_write_b64 {v(t+1)}, {v(PT+4,2)}")
        a.label("Lt3")
        a(f"s_andn2_b64 exec, s[40:41], vcc\ns_cbranch_execz Lt2")
        a(f"v_lshlrev_b32 {v(t)}, 4, v0\nv_add_u32 {v(t)}, {L_TA - 320*16}, {v(t)}\nds_write_b128 {v(t)}, {v(PT,4)}")
        a.label("Lt2")
        a(f"s_mov_b64 exec, {s(sEx,2)}\ns_waitcnt lgkmcnt(0)\ns_barrier")
        a(f"s_cmp_ge_u32 s2, 108\ns_cbranch_scc1 Lu2")
        a(f"v_and_b32 {v(t)}, 31, {v(lane)}\nv_lshrrev_b32 {v(t+1)}, 5, {v(lane)}\ns_mul_i32 {s(sT0)}, {s(sWave)}, 160\nv_lshl_add_u32 {v(t+1)}, {v(t+1)}, 4, {s(sT0)}")
        a(f"v_mul_u32_u24 {v(t+2)}, {L_SB}, {v(t)}\nv_add_u32 {v(t+1)}, {v(t+1)}, {v(t+2)}\nv_cmp_gt_u32 vcc, 2, {v(t)}")
        for i in range(20): a(f"v_mov_b32 {v(TOK+i)}, 0")
        a(f"s_and_saveexec_b64 {s(sEx,2)}, vcc")
        for i in range(5): a(f"ds_read_b128 {v(TOK+4*i,4)}, {v(t+1)} offset:{32*i}")
        a(f"s_mov_b64 exec, {s(sEx,2)}\ns_waitcnt vmcnt(0) lgkmcnt(0)")
        D = ACC + 24
        for i in range(5): a(f"v_mfma_f32_32x32x16_bf16 {v(D,16)}, {v(UF+4*i,4)}, {v(TOK+4*i,4)}, {'0' if i == 0 else v(D,16)}")
        a(f"s_lshl_b32 {s(sT0)}, {s(sWave)}, 8\ns_add_u32 {s(sT0)}, {s(sT0)}, {L_X}\nv_lshl_add_u32 {v(t+1)}, {v(t)}, 7, {s(sT0)}\nv_lshrrev_b32 {v(t+2)}, 5, {v(lane)}\nv_lshl_add_u32 {v(t+1)}, {v(t+2)}, 4, {v(t+1)}")
        a(f"s_nop 6\ns_and_saveexec_b64 {s(sEx,2)}, vcc")
        for g in range(4): a(f"ds_write_b128 {v(t+1)}, {v(D+4*g,4)} offset:{32*g}")
        a(f"s_mov_b64 exec, {s(sEx,2)}")
        self.last_arriver(L_BAD + 12, 8, "Lu2")
        a(f"v_lshlrev_b32 {v(t)}, 2, {v(lane)}\nv_add_u32 {v(t)}, {L_X}, {v(t)}")
        for i in range(4): a(f"ds_read2st64_b32 {v(D+2*i,2)}, {v(t)} offset0:{2*i} offset1:{2*i+1}")
        a("s_waitcnt lgkmcnt(0)")
        for j in (4, 2, 1):
            for i in range(j): a(f"v_add_f32 {v(D+i)}, {v(D+i)}, {v(D+i+j)}")
        a(f"v_mov_b32 {v(D+1)}, {v(D)}\ns_nop 1\nv_permlane32_swap_b32 {v(D)}, {v(D+1)}")
        for j in range(2):
            x = D + j; hi = D + 2 + j; lo = D + 4 + j
            a(f"v_cvt_pk_bf16_f32 {v(hi)}, {v(x)}, {v(x)}\nv_and_b32 {v(hi)}, 0xffff0000, {v(hi)}\nv_sub_f32 {v(lo)}, {v(x)}, {v(hi)}")
        o = D + 8
        a(f"v_cvt_pk_bf16_f32 {v(o)}, {v(D+2)}, {v(D+4)}\nv_cvt_pk_bf16_f32 {v(o+1)}, {v(D+2)}, {v(D+3)}\nv_cvt_pk_bf16_f32 {v(o+2)}, {v(D+5)}, {v(D+3)}\nv_mov_b32 {v(o+3)}, 0")
        a("s_mov_b32 exec_lo, 0")
        for j in range(3): a(f"v_mov_b32 {v(o+j)}, 0")
        a(f"s_mov_b32 exec_lo, -1\ns_lshl_b32 {s(sT0)}, s2, 10\ns_add_u32 {s(sT0)}, {s(sT0)}, {UVF:#x}")
        a(f"buffer_store_dwordx4 {v(o,4)}, {v(vD)}, {s(SRD,4)}, {s(sT0)} offen sc1\ns_waitcnt vmcnt(0)")
        self.flag_store(FU, 2, 128, t)
        a.label("Lu2")
        a(f"s_cmp_lg_u32 {s(sWave)}, 0\ns_cbranch_scc1 Lq4")
        self.poll16(F2, "row", "2")
        a.label("Lq4")
        a("s_barrier")
        self.stamp("f2seen")
        a(f"s_lshl_b32 {s(sT0)}, {s(sTb)}, 1\ns_lshr_b32 {s(sT1)}, {s(sM)}, 3\ns_add_u32 {s(sT0)}, {s(sT0)}, {s(sT1)}\ns_mul_i32 {s(sT0)}, {s(sT0)}, 81920\ns_add_u32 {s(sT0)}, {s(sT0)}, {OF:#x}")
        a(f"s_mul_i32 {s(sT1)}, {s(sWave)}, 10240\ns_add_u32 {s(sT0)}, {s(sT0)}, {s(sT1)}\ns_add_u32 m0, {s(sT1)}, {L_BIG}\ns_nop 0")
        for i in range(10):
            if i and i % 4 == 0: a(f"s_add_u32 {s(sT0)}, {s(sT0)}, 4096\ns_add_u32 m0, m0, 4096\ns_nop 0")
            a(f"buffer_load_dwordx4 {v(vD)}, {s(SRD,4)}, {s(sT0)} offen offset:{(i%4)*1024} sc1 lds")
        a("s_waitcnt vmcnt(0)\ns_barrier")
        self.stamp("oin")
        a(f"s_cmp_ge_u32 {s(sWave)}, 4\ns_cbranch_scc1 Lp3b")
        for fp in range(2):
            if fp: a.label("Lp3b")
            nf = 3 - fp
            sc = Sched()
            def ldT(i5):
                b = TOK + 16 * (i5 & 1)
                for i in range(4):
                    if i5 < 4: sc.lds(f"ds_read_b128 {v(b+4*i,4)}, {v(vT+i)} offset:{i5*8192}", f"T{i5}_{i}")
                    else: sc.lds(f"ds_read2_b64 {v(b+4*i,4)}, {v(vRm+i)} offset0:0 offset1:64", f"T{i5}_{i}")
            ldT(0)
            for i5 in range(5):
                if i5 < 4: ldT(i5 + 1)
                for i in range(4):
                    for f in range(nf):
                        d = ACC + (f * 4 + i) * 4
                        sc.use(f"v_mfma_f32_16x16x32_bf16 {v(d,4)}, {v(PIN+4*(i5*nf+f),4)}, {v(TOK+16*(i5&1)+4*i,4)}, {'0' if i5 == 0 else v(d,4)}", [f"T{i5}_{i}"])
            sc.render(a, loop=False)
            a("s_barrier")
            self.p4_tile_dma(0); self.p4_tile_dma(1)
            if fp == 0:
                for n in range(5):
                    _, f, j = self.pin_list(0)[1][n]
                    a(f"s_add_u32 {s(sT4)}, {s(sB)}, {self.wd_off(0, f, j):#x}\nbuffer_load_dwordx4 {v(PIN+40+4*n,4)}, {v(vD)}, {s(SRD,4)}, {s(sT4)} offen sc1")
            self.reduce4(fp, ACC, TOK, vT)
            GA = TOK; G2 = TOK + 12; S1, S2 = PT, PT + 1; XO = PT + 4
            a(f"v_lshrrev_b32 {v(t)}, 4, {v(lane)}\nv_lshlrev_b32 {v(t+1)}, 4, {v(t)}")
            for f in range(nf): a(f"ds_read_b128 {v(GA+4*f,4)}, {v(t+1)} offset:{L_TA + (3*fp+f)*64}")
            a(f"s_and_b32 {s(sT0)}, {s(sM)}, 7\ns_mul_i32 {s(sT0)}, {s(sT0)}, 160\nv_and_b32 {v(t+1)}, 1, {v(t)}\nv_lshl_add_u32 {v(t+1)}, {v(t+1)}, 4, {s(sT0)}\nv_lshrrev_b32 {v(t)}, 1, {v(t)}\nv_lshl_add_u32 {v(t+1)}, {v(t)}, 3, {v(t+1)}")
            for f in range(nf): a(f"ds_read_b64 {v(G2+2*f,2)}, {v(t+1)} offset:{L_GB + (3*fp+f)*32}")
            a(f"v_mov_b32 {v(S1)}, 0\nv_mov_b32 {v(S2)}, 0\ns_waitcnt lgkmcnt(0)")
            for f in range(nf):
                d = ACC + 16 * f
                for j in range(2):
                    x = X1 + 2 * f + j; g = G2 + 2 * f + j
                    a(f"v_lshlrev_b32 {v(t)}, 16, {v(x)}\nv_and_b32 {v(t+1)}, 0xffff0000, {v(x)}")
                    a(f"v_fmac_f32 {v(t)}, {v(GA+4*f+2*j)}, {v(d+2*j)}\nv_fmac_f32 {v(t+1)}, {v(GA+4*f+2*j+1)}, {v(d+2*j+1)}\nv_cvt_pk_bf16_f32 {v(x)}, {v(t)}, {v(t+1)}")
                    a(f"v_lshlrev_b32 {v(t)}, 16, {v(x)}\nv_and_b32 {v(t+1)}, 0xffff0000, {v(x)}\nv_lshlrev_b32 {v(t+2)}, 16, {v(g)}\nv_and_b32 {v(t+3)}, 0xffff0000, {v(g)}")
                    a(f"v_add_f32 {v(S1)}, {v(S1)}, {v(t)}\nv_fmac_f32 {v(S2)}, {v(t)}, {v(t)}\nv_add_f32 {v(S1)}, {v(S1)}, {v(t+1)}\nv_fmac_f32 {v(S2)}, {v(t+1)}, {v(t+1)}")
                    a(f"v_mul_f32 {v(t)}, {v(t)}, {v(t+2)}\nv_mul_f32 {v(t+1)}, {v(t+1)}, {v(t+3)}")
                    a(f"v_cvt_pk_bf16_f32 {v(XO+2*f+j)}, {v(t)}, {v(t+1)}")
            a(f"s_lshl_b32 {s(sT0)}, {s(sTb)}, 2\ns_lshr_b32 {s(sT1)}, {s(sM)}, 3\ns_lshl_b32 {s(sT1)}, {s(sT1)}, 1\ns_add_u32 {s(sT0)}, {s(sT0)}, {s(sT1)}\ns_bfe_u32 {s(sT1)}, {s(sWave)}, 0x10001\ns_add_u32 {s(sT2)}, {s(sT0)}, {s(sT1)}")
            a(f"s_mul_i32 {s(sT0)}, {s(sT2)}, 40\ns_and_b32 {s(sT3)}, {s(sM)}, 7\ns_mul_i32 {s(sT1)}, {s(sT3)}, 5\ns_add_u32 {s(sT0)}, {s(sT0)}, {s(sT1)}\ns_lshl_b32 {s(sT0)}, {s(sT0)}, 10\ns_add_u32 {s(sT0)}, {s(sT0)}, {XG + 3*fp*1024:#x}")
            a(f"s_and_b32 {s(sT1)}, {s(sWave)}, 1\ns_lshl_b32 {s(sT4)}, {s(sT1)}, 8\ns_add_u32 {s(sT0)}, {s(sT0)}, {s(sT4)}")
            a(f"v_and_b32 {v(t)}, 15, {v(lane)}\nv_lshlrev_b32 {v(t)}, 4, {v(t)}\nv_bfe_u32 {v(t+1)}, {v(lane)}, 4, 1\nv_lshl_add_u32 {v(t)}, {v(t+1)}, 9, {v(t)}\nv_lshrrev_b32 {v(t+1)}, 5, {v(lane)}\nv_lshl_add_u32 {v(t)}, {v(t+1)}, 10, {v(t)}")
            a(f"v_permlane32_swap_b32 {v(XO)}, {v(XO+2)}\nv_permlane32_swap_b32 {v(XO+1)}, {v(XO+3)}")
            a(f"buffer_store_dwordx4 {v(XO,4)}, {v(t)}, {s(SRD,4)}, {s(sT0)} offen sc1")
            if fp == 0:
                a(f"v_permlane32_swap_b32 {v(XO+4)}, {v(XO+6)}\nv_permlane32_swap_b32 {v(XO+5)}, {v(XO+7)}")
                a(f"s_mov_b32 exec_hi, 0\nbuffer_store_dwordx4 {v(XO+4,4)}, {v(t)}, {s(SRD,4)}, {s(sT0)} offen offset:2048 sc1\ns_mov_b32 exec_hi, -1")
            a(f"v_mov_b32 {v(PT+2)}, {v(S1)}\nv_mov_b32 {v(PT+3)}, {v(S2)}\ns_nop 1\nv_permlane32_swap_b32 {v(S1)}, {v(PT+2)}\nv_permlane32_swap_b32 {v(S2)}, {v(PT+3)}")
            a(f"v_add_f32 {v(S1)}, {v(S1)}, {v(PT+2)}\nv_add_f32 {v(S2)}, {v(S2)}, {v(PT+3)}\nv_mov_b32 {v(PT+2)}, {v(S1)}\nv_mov_b32 {v(PT+3)}, {v(S2)}\ns_nop 1")
            a(f"v_permlane16_swap_b32 {v(S1)}, {v(PT+2)}\nv_permlane16_swap_b32 {v(S2)}, {v(PT+3)}\nv_add_f32 {v(S1)}, {v(S1)}, {v(PT+2)}\nv_add_f32 {v(S2)}, {v(S2)}, {v(PT+3)}")
            a(f"s_lshl_b32 {s(sT2)}, {s(sT2)}, 12\ns_lshl_b32 {s(sT3)}, {s(sT3)}, 9\ns_add_u32 {s(sT2)}, {s(sT2)}, {s(sT3)}\ns_lshl_b32 {s(sT1)}, {s(sT1)}, 7\ns_add_u32 {s(sT2)}, {s(sT2)}, {s(sT1)}\ns_add_u32 {s(sT2)}, {s(sT2)}, {ST + fp*256:#x}")
            a(f"v_lshlrev_b32 {v(t)}, 3, {v(lane)}\ns_mov_b64 exec, 0xffff\nbuffer_store_dwordx2 {v(S1,2)}, {v(t)}, {s(SRD,4)}, {s(sT2)} offen sc1\ns_mov_b64 exec, -1")
            if fp == 0: a("s_branch Lp3e")
        a.label("Lp3e")
        a("s_waitcnt vmcnt(0)\ns_barrier")
        a(f"s_cmp_lg_u32 {s(sWave)}, 0\ns_cbranch_scc1 Lf3")
        self.flag_store(F3, sId, 128, t)
        a.label("Lf3")
        self.stamp("f3")
        R.free("ACC", "TOK", "PT", "vT", "vRm", "vA")

    def p4_tile_dma(self, j):
        a, R = self.a, self.R; vD = R["vD"]
        a(f"s_mul_i32 {s(sT0)}, {s(sM)}, 40\ns_mul_i32 {s(sT1)}, {s(sWave)}, 5\ns_add_u32 {s(sT0)}, {s(sT0)}, {s(sT1)}\ns_lshl_b32 {s(sT0)}, {s(sT0)}, 10\ns_add_u32 {s(sT0)}, {s(sT0)}, {WGF + j*16*40960:#x}")
        a(f"s_lshl_b32 {s(sT1)}, {s(sT1)}, 10\ns_add_u32 m0, {s(sT1)}, {L_BIG + (j%3)*40960}\ns_nop 0")
        for i in range(4): a(f"buffer_load_dwordx4 {v(vD)}, {s(SRD,4)}, {s(sT0)} offen offset:{i*1024} sc1 lds")
        a(f"s_add_u32 {s(sT0)}, {s(sT0)}, 4096\ns_add_u32 m0, m0, 4096\ns_nop 0\nbuffer_load_dwordx4 {v(vD)}, {s(SRD,4)}, {s(sT0)} offen sc1 lds")

    def p4(self):
        a, R = self.a, self.R
        t, lane, vD = R["t"], R["lane"], R["vD"]
        XR = R.alloc("XR", 80, at=16); AC = R.alloc("AC", 32, at=96); WF = R.alloc("WF", 12, at=136); RC = R.alloc("RC", 16, at=148)
        UT = R.alloc("UT", 4, at=164); UW = R.alloc("UW", 4, at=168); vW, vX, rs = t + 4, t + 5, t + 6
        E = R.alloc("E", 4, at=128); HO = R.alloc("HO", 4, at=172)
        self.p4_tile_dma(2)
        a(f"s_cmp_lg_u32 {s(sWave)}, 0\ns_cbranch_scc1 Lq5")
        def extra(p):
            a(f"v_subrev_u32 {v(p+1)}, 16, {v(lane)}\nv_lshl_add_u32 {v(p+2)}, {v(p+1)}, 4, {s(sM)}\nv_min_u32 {v(p+2)}, 107, {v(p+2)}\nv_lshlrev_b32 {v(p+2)}, 7, {v(p+2)}\nv_add_u32 {v(p+2)}, {FU:#x}, {v(p+2)}")
            a(f"v_cmp_gt_u32 vcc, 7, {v(p+1)}\ns_nop 1\nv_cndmask_b32 {v(p)}, {v(p)}, {v(p+2)}, vcc")
        self.poll16(F3, "row", "3", extra=extra)
        a.label("Lq5")
        a("s_barrier")
        self.stamp("f3seen")
        a(f"s_and_b32 {s(sT0)}, {s(sWave)}, 3\ns_lshl_b32 {s(sT1)}, {s(sTb)}, 2\ns_add_u32 {s(sC_)}, {s(sT0)}, {s(sT1)}")
        a(f"s_lshl_b32 {s(sT0)}, {s(sC_)}, 12\ns_add_u32 {s(sT0)}, {s(sT0)}, {ST:#x}\nv_and_b32 {v(t)}, 31, {v(lane)}\nv_lshlrev_b32 {v(t)}, 3, {v(t)}\nv_lshrrev_b32 {v(t+1)}, 5, {v(lane)}\nv_lshl_add_u32 {v(t)}, {v(t+1)}, 11, {v(t)}")
        for i in range(8): a(f"buffer_load_dwordx2 {v(RC+2*i,2)}, {v(t)}, {s(SRD,4)}, {s(sT0)} offen offset:{i*256} sc1")
        a(f"s_mul_i32 {s(sT0)}, {s(sC_)}, 40\ns_lshr_b32 {s(sT1)}, {s(sWave)}, 2\ns_mul_i32 {s(sT2)}, {s(sT1)}, 20\ns_add_u32 {s(sT0)}, {s(sT0)}, {s(sT2)}\ns_lshl_b32 {s(sT0)}, {s(sT0)}, 10\ns_add_u32 {s(sT0)}, {s(sT0)}, {XG:#x}")
        for u in range(20):
            if u and u % 4 == 0: a(f"s_add_u32 {s(sT0)}, {s(sT0)}, 4096")
            a(f"buffer_load_dwordx4 {v(XR+4*u,4)}, {v(vD)}, {s(SRD,4)}, {s(sT0)} offen offset:{(u%4)*1024} sc1")
        a(f"s_mul_i32 {s(sT2)}, {s(sT1)}, 20480\ns_add_u32 {s(sT2)}, {s(sT2)}, {L_BIG}\nv_add_u32 {v(vW)}, {s(sT2)}, {v(vD)}")
        a(f"s_and_b32 {s(sT0)}, {s(sWave)}, 3\ns_lshl_b32 {s(sT0)}, {s(sT0)}, 12\ns_add_u32 {s(sT0)}, {s(sT0)}, {L_X}\nv_add_u32 {v(vX)}, {s(sT0)}, {v(vD)}")
        a(f"s_mul_i32 {s(sA)}, {s(sC_)}, 108\ns_add_u32 {s(sA)}, {s(sA)}, {s(sM)}\ns_lshl_b32 {s(sA)}, {s(sA)}, 10\ns_add_u32 {s(sA)}, {s(sA)}, {HF:#x}")
        a(f"s_lshl_b32 {s(sD)}, {s(sM)}, 10\ns_add_u32 {s(sD)}, {s(sD)}, {UVF:#x}")
        a("s_waitcnt vmcnt(20)")
        for j in (4, 2, 1):
            for i in range(j): a(f"v_add_f32 {v(RC+2*i)}, {v(RC+2*i)}, {v(RC+2*i+2*j)}\nv_add_f32 {v(RC+2*i+1)}, {v(RC+2*i+1)}, {v(RC+2*i+1+2*j)}")
        a(f"v_mov_b32 {v(RC+2)}, {v(RC)}\nv_mov_b32 {v(RC+3)}, {v(RC+1)}\ns_nop 1\nv_permlane32_swap_b32 {v(RC)}, {v(RC+2)}\nv_permlane32_swap_b32 {v(RC+1)}, {v(RC+3)}")
        a(f"v_add_f32 {v(RC)}, {v(RC)}, {v(RC+2)}\nv_add_f32 {v(RC+1)}, {v(RC+1)}, {v(RC+3)}\nv_mul_f32 {v(RC)}, {f2u(-1/640):#x}, {v(RC)}\nv_mul_f32 {v(RC+1)}, {f2u(1/640):#x}, {v(RC+1)}")
        a(f"v_fma_f32 {v(RC+1)}, -{v(RC)}, {v(RC)}, {v(RC+1)}\nv_max_f32 {v(RC+1)}, 0, {v(RC+1)}\nv_add_f32 {v(RC+1)}, {f2u(1e-5):#x}, {v(RC+1)}")
        a(f"v_rsq_f32 {v(rs)}, {v(RC+1)}\ns_nop 0\nv_mul_f32 {v(RC+1)}, {v(RC+1)}, {v(rs)}")
        for j in range(2):
            x = RC + j; hi = RC + 2 + j; lo = RC + 4 + j
            a(f"v_cvt_pk_bf16_f32 {v(hi)}, {v(x)}, {v(x)}\nv_and_b32 {v(hi)}, 0xffff0000, {v(hi)}\nv_sub_f32 {v(lo)}, {v(x)}, {v(hi)}")
        a(f"v_cvt_pk_bf16_f32 {v(UT)}, {v(RC+2)}, {v(RC+2)}\nv_cvt_pk_bf16_f32 {v(UT+1)}, {v(RC+4)}, {v(RC+3)}\nv_cvt_pk_bf16_f32 {v(UT+2)}, {v(RC+3)}, {v(RC+5)}\nv_mov_b32 {v(UT+3)}, 0")
        k1 = 2 * 0.7978845608028654 * LOG2E
        a(f"s_mov_b32 {s(sT5)}, {f2u(-k1*0.044715):#x}\ns_mov_b32 {s(sG2)}, {f2u(-k1):#x}")
        def epilogue(j, acc):
            o = []
            for g in range(4): o.append(("lds", f"ds_read_b128 {v(RC+4*g,4)}, {v(vX)} offset:{g*1024}", f"R{j}_{g}"))
            for g in (0, 2, 1, 3):
                o.append(("use", f"v_add_f32 {v(acc+4*g)}, {v(acc+4*g)}, {v(RC+4*g)}", [f"R{j}_{g}"]))
                for i in range(1, 4): o.append(("op", f"v_add_f32 {v(acc+4*g+i)}, {v(acc+4*g+i)}, {v(RC+4*g+i)}"))
            for i in range(0, 8, 2):
                P = [(acc + i + d, acc + 8 + i + d, E + 2 * d, E + 2 * d + 1) for d in range(2)]
                for G_, U_, e0, e1 in P: o.append(("op", f"v_mul_f32 {v(G_)}, {v(G_)}, {v(rs)}"))
                for G_, U_, e0, e1 in P: o.append(("op", f"v_mul_f32 {v(e0)}, {v(G_)}, {v(G_)}"))
                for G_, U_, e0, e1 in P: o.append(("op", f"v_mov_b32 {v(e1)}, {s(sG2)}"))
                for G_, U_, e0, e1 in P: o.append(("op", f"v_fmac_f32 {v(e1)}, {s(sT5)}, {v(e0)}"))
                for G_, U_, e0, e1 in P: o.append(("op", f"v_mul_f32 {v(e1)}, {v(e1)}, {v(G_)}"))
                for G_, U_, e0, e1 in P: o.append(("op", f"v_exp_f32 {v(e1)}, {v(e1)}"))
                for G_, U_, e0, e1 in P: o.append(("op", f"v_mul_f32 {v(U_)}, {v(U_)}, {v(rs)}"))
                for G_, U_, e0, e1 in P: o.append(("op", f"v_add_f32 {v(e1)}, 1.0, {v(e1)}"))
                for G_, U_, e0, e1 in P: o.append(("op", f"v_rcp_f32 {v(e1)}, {v(e1)}"))
                for G_, U_, e0, e1 in P: o.append(("op", f"v_mul_f32 {v(G_)}, {v(G_)}, {v(U_)}"))
                for G_, U_, e0, e1 in P: o.append(("op", f"v_mul_f32 {v(G_)}, {v(G_)}, {v(e1)}"))
                o.append(("op", f"v_cvt_pk_bf16_f32 {v(HO+i//2)}, {v(acc+i)}, {v(acc+i+1)}"))
            o.append(("op", f"s_add_u32 {s(sT4)}, {s(sA)}, {j*16384}\nbuffer_store_dwordx4 {v(HO,4)}, {v(vD)}, {s(SRD,4)}, {s(sT4)} offen sc1"))
            return o
        def emit(sc, e):
            if e[0] == "op": sc.op(e[1])
            elif e[0] == "lds": sc.lds(e[1], e[2])
            else: sc.use(e[1], e[2])
        def publish(n):
            L = a.newlabel("Lf4")
            return (f"s_cmp_lg_u32 {s(sWave)}, 0\ns_cbranch_scc1 {L}\ns_add_u32 {s(sT1)}, {s(sN)}, {n}\ns_lshl_b32 {s(sT0)}, {s(sId)}, 7\ns_add_u32 {s(sT0)}, {s(sT0)}, {F4:#x}\n"
                    f"v_mov_b32 {v(t)}, {s(sT1)}\nv_mov_b32 {v(t+1)}, 0\ns_mov_b64 exec, 1\nbuffer_store_dword {v(t)}, {v(t+1)}, {s(SRD,4)}, {s(sT0)} offen sc1\ns_mov_b64 exec, -1\n{L}:")
        a(f"s_cmp_ge_u32 {s(sWave)}, 4\ns_cbranch_scc1 Lp4b")
        for kh in range(2):
            if kh: a.label("Lp4b")
            for j in range(7):
                recv = (j & 1) == kh
                acc = AC + 16 * (j & 1)
                pend = epilogue(j - 1, AC + 16 * ((j - 1) & 1)) if j and ((j - 1) & 1) == kh else []
                if j == 6:
                    a(f"s_cmp_ge_u32 {s(sM)}, 12\ns_cbranch_scc1 Lp4x{kh}")
                if j:
                    a("s_waitcnt vmcnt(0) lgkmcnt(0)\ns_barrier")
                    if j + 2 < 7:
                        self.p4_tile_dma(j + 2)
                    if j >= 2: a(publish(j - 1))
                    a(f"v_add_u32 {v(vW)}, {(40960 if j % 3 else -81920) & 0xffffffff:#x}, {v(vW)}")
                if recv: a(f"s_add_u32 {s(sT4)}, {s(sD)}, {j*16384}\nbuffer_load_dwordx4 {v(UW,4)}, {v(vD)}, {s(SRD,4)}, {s(sT4)} offen sc1")
                sc = Sched()
                def ldW(u): sc.lds(f"ds_read_b128 {v(WF+4*(u%3),4)}, {v(vW)} offset:{u*1024}", f"W{u}")
                ldW(0); ldW(1)
                per = (len(pend) + 15) // 16
                for u in range(20):
                    if u + 2 < 20: ldW(u + 2)
                    if j == 0 and u % 4 == 0: sc.op(f"s_waitcnt vmcnt({16 - u + (1 if recv else 0)})")
                    sc.use(f"v_mfma_f32_32x32x16_bf16 {v(acc,16)}, {v(WF+4*(u%3),4)}, {v(XR+4*u,4)}, {'0' if u == 0 else v(acc,16)}", [f"W{u}"])
                    for e in pend[u*per:(u+1)*per]: emit(sc, e)
                if recv:
                    sc.op(f"s_waitcnt vmcnt(0)\nv_mfma_f32_32x32x16_bf16 {v(acc,16)}, {v(UW,4)}, {v(UT,4)}, {v(acc,16)}")
                else:
                    sc.op("s_nop 11")
                    for g in range(4): sc.op(f"ds_write_b128 {v(vX)}, {v(acc+4*g,4)} offset:{g*1024}")
                sc.render(a, loop=False)
            a("s_waitcnt vmcnt(0) lgkmcnt(0)\ns_barrier")
            a(publish(6))
            if kh == 0:
                sc = Sched(); sc.op("s_nop 3")
                for e in epilogue(6, AC): emit(sc, e)
                sc.render(a, loop=False)
            a("s_branch Lp4e")
            a.label(f"Lp4x{kh}")
            a("s_waitcnt vmcnt(0) lgkmcnt(0)\ns_barrier")
            if kh == 1:
                sc = Sched(); sc.op("s_nop 3")
                for e in epilogue(5, AC + 16): emit(sc, e)
                sc.render(a, loop=False)
            if kh == 0: a("s_branch Lp4e")
        a.label("Lp4e")
        a("s_waitcnt vmcnt(0)\ns_barrier")
        a(publish(7))
        self.stamp("p4")
        R.free("XR", "AC", "WF", "RC", "UT", "UW", "E", "HO")

    def p5(self):
        a, R = self.a, self.R
        t, lane, vD, X1 = R["t"], R["lane"], R["vD"], R["X1"]
        ACC = R.alloc("ACC", 48, at=16); TOK = R.alloc("TOK", 32, at=64); vT = R.alloc("vT", 4, at=116)
        vT2 = R.alloc("vT2", 4, at=120); vA = R.alloc("vA", at=125)
        free0 = [96, 100, 104, 108, 112] + list(range(136, 176, 4))
        a(f"s_lshl_b32 {s(sT0)}, {s(sTb)}, 2\ns_lshr_b32 {s(sT1)}, {s(sM)}, 3\ns_lshl_b32 {s(sT1)}, {s(sT1)}, 1\ns_add_u32 {s(sT0)}, {s(sT0)}, {s(sT1)}\ns_lshr_b32 {s(sT1)}, {s(sWave)}, 2\ns_add_u32 {s(sT0)}, {s(sT0)}, {s(sT1)}")
        a(f"s_mul_i32 {s(sA)}, {s(sT0)}, 108\ns_and_b32 {s(sT1)}, {s(sWave)}, 3\ns_lshl_b32 {s(sT1)}, {s(sT1)}, 2\ns_add_u32 {s(sA)}, {s(sA)}, {s(sT1)}\ns_lshl_b32 {s(sA)}, {s(sA)}, 10\ns_add_u32 {s(sA)}, {s(sA)}, {HF:#x}")
        a(f"s_lshl_b32 {s(sD)}, {s(sWave)}, 12\ns_add_u32 {s(sD)}, {s(sD)}, {L_BIG}")
        def hdma(sg):
            o = f"s_add_u32 {s(sT0)}, {s(sA)}, {sg*16384}\ns_add_u32 m0, {s(sD)}, {(sg&3)*32768}\ns_nop 0\n"
            for i in range(4): o += f"buffer_load_dwordx4 {v(vD)}, {s(SRD,4)}, {s(sT0)} offen offset:{i*1024} sc1 lds\n"
            return o
        def poll(n, lab):
            a(f"s_cmp_lg_u32 {s(sWave)}, 0\ns_cbranch_scc1 Lq6{lab}")
            self.poll16(F4, "row", "4" + lab, minval=n)
            a.label(f"Lq6{lab}")
        poll(4, "a")
        a("s_barrier")
        self.tok_addr(vT, L_BIG, 16384, 4)
        for i in range(4): a(f"v_add_u32 {v(vT2+i)}, 65536, {v(vT+i)}")
        a(f"s_cmp_ge_u32 {s(sWave)}, 4\ns_cbranch_scc1 Lp5b")
        for fp in range(2):
            if fp: a.label("Lp5b")
            nf = 3 - fp
            wd = self.pin_list(fp)[1]
            reg = {n: PIN + 40 + 4 * n for n in range(20)}
            free = list(free0)
            vm = []
            nxt = [20]
            def wload(cnt):
                for _ in range(cnt):
                    if nxt[0] >= len(wd) or not free: return
                    n = nxt[0]; nxt[0] += 1
                    reg[n] = free.pop(0)
                    _, f, j = wd[n]
                    a(f"s_add_u32 {s(sT4)}, {s(sB)}, {self.wd_off(fp, f, j):#x}\nbuffer_load_dwordx4 {v(reg[n],4)}, {v(vD)}, {s(SRD,4)}, {s(sT4)} offen sc1")
                    vm.append(("w", n))
            def vwait(tag):
                if tag not in vm: return
                i = len(vm) - 1 - vm[::-1].index(tag)
                a(f"s_waitcnt vmcnt({len(vm)-1-i})")
                del vm[:i + 1]
            for sg in range(4):
                a(hdma(sg)); vm += [("h", sg)] * 4
            wload(len(free))
            for sg in range(7):
                if sg in (1, 3):
                    poll(6 if sg == 1 else 7, f"{fp}{sg}")
                vwait(("h", sg))
                a("s_waitcnt lgkmcnt(0)\ns_barrier")
                if 1 <= sg <= 3:
                    a(hdma(sg + 3)); vm += [("h", sg + 3)] * 4
                if sg == 6: a(f"s_and_b32 {s(sT0)}, {s(sWave)}, 3\ns_cmp_eq_u32 {s(sT0)}, 3\ns_cbranch_scc1 Lp5s{fp}")
                for e in range(2):
                    for f in range(nf): vwait(("w", (2 * sg + e) * nf + f))
                sc = Sched()
                for e in range(2):
                    for i in range(4):
                        off = (sg & 3) * 32768 + e * 2048
                        va = vT + i
                        if off >= 65536: va, off = vT2 + i, off - 65536
                        sc.lds(f"ds_read_b128 {v(TOK+16*e+4*i,4)}, {v(va)} offset:{off}", f"T{e}_{i}")
                for e in range(2):
                    for i in range(4):
                        for f in range(nf):
                            d = ACC + (f * 4 + i) * 4
                            n = (2 * sg + e) * nf + f
                            sc.use(f"v_mfma_f32_16x16x32_bf16 {v(d,4)}, {v(reg[n],4)}, {v(TOK+16*e+4*i,4)}, {'0' if sg == 0 and e == 0 else v(d,4)}", [f"T{e}_{i}"])
                sc.render(a, loop=False)
                for n in range(2 * sg * nf, 2 * (sg + 1) * nf): free.append(reg[n])
                wload(2 * nf)
            a.label(f"Lp5s{fp}")
            a("s_waitcnt vmcnt(0)\ns_barrier")
            if fp == 0: self.stamp("p5m")
            self.reduce4(fp, ACC, TOK, vT)
            GB = TOK; XO = 96
            a(f"v_lshrrev_b32 {v(t)}, 4, {v(lane)}\nv_lshlrev_b32 {v(t+1)}, 4, {v(t)}")
            for f in range(nf): a(f"ds_read_b128 {v(GB+4*f,4)}, {v(t+1)} offset:{L_TA + 320 + (3*fp+f)*64}")
            self.row_col(vA, None)
            a("s_waitcnt lgkmcnt(0)")
            for f in range(nf):
                d = ACC + 16 * f
                for j in range(2):
                    x = X1 + 2 * f + j
                    a(f"v_lshlrev_b32 {v(t)}, 16, {v(x)}\nv_and_b32 {v(t+1)}, 0xffff0000, {v(x)}")
                    a(f"v_fmac_f32 {v(t)}, {v(GB+4*f+2*j)}, {v(d+2*j)}\nv_fmac_f32 {v(t+1)}, {v(GB+4*f+2*j+1)}, {v(d+2*j+1)}\nv_cvt_pk_bf16_f32 {v(XO+2*f+j)}, {v(t)}, {v(t+1)}")
                a(f"global_store_dwordx2 {v(vA)}, {v(XO+2*f,2)}, {s(P_OUT,2)} offset:{32*f}")
            if fp == 0: a("s_branch Lp5e")
        a.label("Lp5e")
        self.stamp("end")
        R.free("ACC", "TOK", "vT", "vT2", "vA")

    def finish(self):
        a, R = self.a, self.R
        t = R["t"]; lane = R["lane"]
        if self.stamps:
            a("s_waitcnt lgkmcnt(0)")
            a(f"s_cmp_lg_u32 {s(sWave)}, 0\ns_cbranch_scc1 Lst")
            a(f"s_lshl_b32 {s(sT0)}, s2, 7\ns_add_u32 {s(sT0)}, {s(sT0)}, {DBG + 0x800000:#x}\nv_mov_b32 {v(t+1)}, 0")
            for i in range(self.nst):
                a(f"v_mov_b32 {v(t)}, {s(sStamp+2*i)}\nbuffer_store_dword {v(t)}, {v(t+1)}, {s(SRD,4)}, {s(sT0)} offen offset:{4*i}")
            a.label("Lst")
        a(f"s_cmp_lg_u32 s2, 0\ns_cbranch_scc1 Lend\ns_cmp_lg_u32 {s(sWave)}, 0\ns_cbranch_scc1 Lend")
        a(f"s_mov_b32 {s(sT1)}, 0")
        self.flag_store(WS_E, sT1, 0, t)
        a.label("Lend")

    def build(self):
        self.p01()
        a, R = self.a, self.R
        if self.stop == 1:
            t = R["t"]
            a(f"v_lshlrev_b32 {v(t)}, 4, v0\nv_add_u32 {v(t+1)}, {L_X}, {v(t)}\nds_read_b128 v[100:103], {v(t+1)}\nds_read_b128 v[104:107], {v(t+1)} offset:8192")
            a(f"s_lshl_b32 {s(sT0)}, {s(sId)}, 14\ns_add_u32 {s(sT0)}, {s(sT0)}, {DBG:#x}\ns_waitcnt lgkmcnt(0)")
            a(f"buffer_store_dwordx4 v[100:103], {v(t)}, {s(SRD,4)}, {s(sT0)} offen\ns_add_u32 {s(sT0)}, {s(sT0)}, 8192\nbuffer_store_dwordx4 v[104:107], {v(t)}, {s(SRD,4)}, {s(sT0)} offen")
        regs = None
        if self.stop >= 2:
            regs = dict(Qr=(10, 2), Qm=(12, 8), SA=(20, 32), SB=(52, 32), O=(84, 32), Km=(116, 4), V=(120, 8), KR=(128, 4),
                        vK=(4, 1), vR=(5, 1), vV=(6, 1), vDma=(7, 1), vM=(8, 1), vT0=(134, 1))
            self.p2()
        if self.stop >= 3: self.p3()
        if self.stop >= 4: self.p4()
        if self.stop >= 5: self.p5()
        self.finish()
        if regs:
            a("s_endpgm")
            self.slow_path(regs)
        a.label("Lcode_end")
        hdr = open("adaLN_cond__mha_block__geglu_ffn__prompt.s.ref").read().split("; Override")[0]
        hdr += f"; generated by gen/gen.py (hand-written generator): one persistent launch, 256 workgroups x 8 waves\n; @launch grid=(256,1,1) block=(512,1,1) lds={LDS_BYTES}\n"
        body = self.a.text()
        return kernel_wrap(NAME, body, vgpr=256, header=hdr)

if __name__ == "__main__":
    import hazard
    stop = int(sys.argv[1]) if len(sys.argv) > 1 else 99
    g = G(stop=stop, stamps=len(sys.argv) > 2)
    txt = g.build()
    hazard.check(txt)
    open("out.s", "w").write(txt)
    print("vgpr high", g.R.high, "lines", txt.count("\n"))
```

```python
import sys
sys.path.insert(0, "gen")
from dsl import *
import attn
from attn import SLOT, HOFF, ROWB, Sched
NAME = "adaLN_cond__mha_block__geglu_ffn__prompt_kernel"
WS_E = 0
F0, F1, F2, F3, F4, FU, FR = 0x10000, 0x18000, 0x20000, 0x28000, 0x30000, 0x38000, 0x40000
FW = 0xC0000
NORM_A, NORM_B = 32, 56
MP1, MP2, ST = 0x50000, 0x60000, 0x80000
WQF, KV, OF, XG, HF = 0x100000, 0x400000, 0xA00000, 0xD00000, 0x1000000
WOF, WDF, WGF, UVF = 0x1700000, 0x1800000, 0x1B00000, 0x2000000
DBG = 0x2100000
WS_SIZE = 0x10000000
K = 1024
L_GB, L_SB, L_TA, L_ZERO, L_BAD = 0, 1280, 2560, 3520, 3584
L_X = 4 * K
L_BIG = 20 * K
L_SCR = 116 * K
L_G, L_S, L_RED = 152 * K, 152 * K + 2560, 152 * K + 5120
L_OX = 92 * K
L_PL = 100 * K
LDS_BYTES = 160 * K
P_X, P_WQKV, P_WO, P_BX, P_WG, P_WU, P_WD, P_C, P_WMOD, P_OUT, P_DBG, P_WS = [4 + 2 * i for i in range(12)]
SRD = 28
sWave, sTb, sM, sN, sId = 32, 33, 34, 35, 36
sT0, sT1, sT2, sT3, sT4, sT5 = 37, 38, 39, 40, 41, 42
sEx = 44
sPoll = 46
S_AT = dict(sKV=48, sTb=sTb, sWave=sWave, sHH=49, sC=50, sDelta=51, sSlot=52, sM0=53, sG=54, sT=55, sM0Beg=56, sM0End=57, sKH=58, sKVw=59)
sA, sB, sC_, sD = 60, 61, 62, 63
sJd, sJs, sJt, sG2, sPa = 64, 65, 66, 67, 68
sStamp = 70
PIN = 136
POLL_MAX = 30000
DETAIL = True
LOG2E = 1.4426950408889634
import struct
def f2u(x): return struct.unpack("<I", struct.pack("<f", x))[0]

class G:
    def __init__(self, stop=99, stamps=False):
        self.a = Asm(); self.R = RegAlloc(1, 256); self.stop = stop; self.stamps = stamps; self.nst = 0
    def stamp(self, name):
        if self.stamps:
            assert self.nst < 16
            self.a(f"s_memrealtime {s(sStamp + 2*self.nst, 2)}")
            self.stnames = getattr(self, "stnames", []) + [name]
            self.nst += 1

    def stamp_txt(self, name):
        self.stnames.append(name); self.nst += 1
        return f"s_memrealtime {s(sStamp + 2*(self.nst-1), 2)}"
    def poll(self, vaddrs, cmp, label):
        a = self.a
        L = a.newlabel("Lp" + label); E = a.newlabel("Lpe" + label)
        a(f"s_mov_b32 {s(sPoll)}, {POLL_MAX}")
        a.label(L)
        for va, vt in vaddrs: a(f"buffer_load_dword {v(vt)}, {v(va)}, {s(SRD,4)}, 0 offen sc1")
        a("s_waitcnt vmcnt(0)")
        cmp()
        a(f"s_cbranch_vccz {E}")
        a(f"s_sub_u32 {s(sPoll)}, {s(sPoll)}, 1\ns_cmp_gt_i32 {s(sPoll)}, 0\ns_cbranch_scc1 {L}")
        a.label(E)
    def flag_store(self, base, sidx, stride, vt, val=None):
        a = self.a
        a(f"s_mul_i32 {s(sT0)}, {s(sidx)}, {stride}\ns_add_u32 {s(sT0)}, {s(sT0)}, {base}")
        a(f"v_mov_b32 {v(vt)}, {s(sN if val is None else val)}\nv_mov_b32 {v(vt+1)}, 0")
        a(f"s_mov_b64 {s(sEx,2)}, exec\ns_mov_b64 exec, 1")
        a(f"buffer_store_dword {v(vt)}, {v(vt+1)}, {s(SRD,4)}, {s(sT0)} offen sc1")
        a(f"s_mov_b64 exec, {s(sEx,2)}")

    def gemv_issue(self, sCol, sKs, rW, rC, t, nl):
        a = self.a; lane = self.R["lane"]
        a(f"s_lshl_b32 {s(sT0)}, {s(sKs)}, 7\ns_mul_i32 {s(sT1)}, {s(sWave)}, {8*nl}\ns_add_u32 {s(sT0)}, {s(sT0)}, {s(sT1)}")
        a(f"v_lshrrev_b32 {v(t)}, 3, {v(lane)}\nv_add_u32 {v(t)}, {s(sT0)}, {v(t)}")
        a(f"v_lshlrev_b32 {v(t+1)}, 1, {v(t)}")
        a(f"v_mul_u32_u24 {v(t)}, 7680, {v(t)}\nv_and_b32 {v(t+2)}, 7, {v(lane)}\nv_lshlrev_b32 {v(t+2)}, 4, {v(t+2)}")
        a(f"v_add3_u32 {v(t)}, {v(t)}, {v(t+2)}, {s(sCol)}")
        for i in range(nl):
            a(f"global_load_dwordx4 {v(rW+4*i,4)}, {v(t)}, {s(P_WMOD,2)}")
            if i + 1 < nl: a(f"v_add_u32 {v(t)}, {8*7680}, {v(t)}")
        for i in range(nl): a(f"global_load_ushort {v(rC+i)}, {v(t+1)}, {s(P_C,2)} offset:{16*i}")
    def gemv_math(self, rW, rC, acc, t, nl):
        a = self.a; lane = self.R["lane"]
        for i in range(nl):
            c = rC + i
            a(f"v_lshlrev_b32 {v(c)}, 16, {v(c)}\nv_mul_f32 {v(t)}, {f2u(-LOG2E):#x}, {v(c)}\nv_exp_f32 {v(t)}, {v(t)}\ns_nop 0\nv_add_f32 {v(t)}, 1.0, {v(t)}")
            a(f"v_rcp_f32 {v(t)}, {v(t)}\ns_nop 0\nv_mul_f32 {v(c)}, {v(c)}, {v(t)}\nv_cvt_pk_bf16_f32 {v(c)}, {v(c)}, {v(c)}\nv_and_b32 {v(c)}, 0xffff0000, {v(c)}")
        for i in range(nl):
            for j in range(4):
                w = rW + 4 * i + j
                a(f"v_lshlrev_b32 {v(t)}, 16, {v(w)}\nv_and_b32 {v(t+1)}, 0xffff0000, {v(w)}")
                if i == 0: a(f"v_mul_f32 {v(acc+2*j)}, {v(t)}, {v(rC)}\nv_mul_f32 {v(acc+2*j+1)}, {v(t+1)}, {v(rC)}")
                else: a(f"v_fmac_f32 {v(acc+2*j)}, {v(t)}, {v(rC+i)}\nv_fmac_f32 {v(acc+2*j+1)}, {v(t+1)}, {v(rC+i)}")
        a("s_nop 1")
        for j in range(4): a(f"v_permlane32_swap_b32 {v(acc+j)}, {v(acc+4+j)}")
        for j in range(4): a(f"v_add_f32 {v(acc+j)}, {v(acc+j)}, {v(acc+4+j)}")
        a("s_nop 1")
        for j in range(2): a(f"v_permlane16_swap_b32 {v(acc+j)}, {v(acc+2+j)}")
        for j in range(2): a(f"v_add_f32 {v(acc+j)}, {v(acc+j)}, {v(acc+2+j)}")
        a("s_nop 1")
        for j in range(2): a(f"v_add_f32_dpp {v(acc+j)}, {v(acc+j)}, {v(acc+j)} row_ror:8 row_mask:0xf bank_mask:0xf")
        a(f"v_and_b32 {v(t)}, 7, {v(lane)}\nv_lshlrev_b32 {v(t)}, 5, {v(t)}\nv_lshrrev_b32 {v(t+1)}, 5, {v(lane)}\nv_lshl_add_u32 {v(t)}, {v(t+1)}, 4, {v(t)}")
        a(f"v_bfe_u32 {v(t+1)}, {v(lane)}, 4, 1\nv_lshl_add_u32 {v(t)}, {v(t+1)}, 3, {v(t)}")
        a(f"s_lshl_b32 {s(sT0)}, {s(sWave)}, 8\ns_add_u32 {s(sT0)}, {s(sT0)}, {L_RED}\nv_add_u32 {v(t)}, {s(sT0)}, {v(t)}")
        a(f"ds_write_b64 {v(t)}, {v(acc,2)}")
    def gemv_final(self, sDst, acc, t, nw):
        a = self.a; lane = self.R["lane"]
        a(f"v_lshlrev_b32 {v(t)}, 2, {v(lane)}\nv_add_u32 {v(t+1)}, {L_RED}, {v(t)}")
        for i in range(nw // 2): a(f"ds_read2st64_b32 {v(acc+2*i,2)}, {v(t+1)} offset0:{2*i} offset1:{2*i+1}")
        a("s_waitcnt lgkmcnt(0)")
        for j in ((4, 2, 1) if nw == 8 else (2, 1)):
            for i in range(j): a(f"v_add_f32 {v(acc+i)}, {v(acc+i)}, {v(acc+i+j)}")
        a(f"buffer_store_dword {v(acc)}, {v(t)}, {s(SRD,4)}, {s(sDst)} offen sc1")

    def p01(self):
        a, R = self.a, self.R
        lane = R.alloc("lane", at=1)
        t = R.alloc("t", 8, at=2)
        gW = R.alloc("gW", 8, at=244); gC = R.alloc("gC", 2, at=252)
        X = R.alloc("X", 80, 4)
        ACC = R.alloc("ACC", 64, 4)
        GD = R.alloc("GD", 10, 2)
        WF = R.alloc("WF", 32, 4)
        SF = R.alloc("SF", 16, 4)
        HB = R.alloc("HB", 8, 4)
        vA = R.alloc("vA"); vB = R.alloc("vB"); vst = R.alloc("vst", 4, 2)
        a(f"s_cmp_ge_u32 s2, 256\ns_cbranch_scc1 Lend")
        a(f"s_load_dwordx16 s[4:19], s[0:1], 0\ns_load_dwordx8 s[20:27], s[0:1], 64")
        self.stamp("start")
        a(f"v_lshrrev_b32 {v(t)}, 6, v0\nv_and_b32 {v(lane)}, 63, v0\ns_nop 0\nv_readfirstlane_b32 {s(sWave)}, {v(t)}")
        a(f"v_mov_b32 {v(t)}, 0\nv_mov_b32 {v(t+1)}, 0\nv_lshlrev_b32 {v(t+2)}, 3, {v(lane)}\nds_write_b64 {v(t+2)}, {v(t,2)} offset:{L_ZERO}")
        a(f"s_and_b32 {s(sT0)}, s2, 1\ns_lshl_b32 {s(sT0)}, {s(sT0)}, 3\ns_bfe_u32 {s(sT1)}, s2, 0x30003\ns_add_u32 {s(sM)}, {s(sT0)}, {s(sT1)}")
        a(f"s_bfe_u32 {s(sT0)}, s2, 0x20001\ns_lshl_b32 {s(sT0)}, {s(sT0)}, 2\ns_lshr_b32 {s(sT1)}, s2, 6\ns_add_u32 {s(sTb)}, {s(sT0)}, {s(sT1)}")
        a(f"s_lshl_b32 {s(sId)}, {s(sTb)}, 4\ns_add_u32 {s(sId)}, {s(sId)}, {s(sM)}")
        a(f"s_mul_i32 {s(sA)}, s2, 3277\ns_lshr_b32 {s(sA)}, {s(sA)}, 16\ns_mul_i32 {s(sT0)}, {s(sA)}, 20\ns_sub_u32 {s(sB)}, s2, {s(sT0)}\ns_lshl_b32 {s(sB)}, {s(sB)}, 7")
        a(f"s_lshl_b32 {s(sC_)}, {s(sWave)}, 4\ns_add_u32 {s(sC_)}, {s(sC_)}, {s(sTb)}")
        a("s_waitcnt lgkmcnt(0)")
        a(f"s_load_dword {s(sN)}, {s(P_WS,2)}, {WS_E}")
        a(f"s_mov_b32 {s(SRD)}, {s(P_WS)}\ns_mov_b32 {s(SRD+1)}, {s(P_WS+1)}\ns_mov_b32 {s(SRD+2)}, {WS_SIZE:#x}\ns_mov_b32 {s(SRD+3)}, 0x20000")
        def xbase(sw):
            a(f"s_and_b32 {s(sT0)}, {s(sw)}, 3\ns_lshl_b32 {s(sT0)}, {s(sT0)}, 5\ns_lshl_b32 {s(sT1)}, {s(sTb)}, 7\ns_add_u32 {s(sT0)}, {s(sT0)}, {s(sT1)}")
            a(f"s_mul_i32 {s(sT0)}, {s(sT0)}, 1280\ns_lshr_b32 {s(sT1)}, {s(sw)}, 2\ns_mul_i32 {s(sT1)}, {s(sT1)}, 640\ns_add_u32 {s(sT0)}, {s(sT0)}, {s(sT1)}")
        def xaddr(sw):
            xbase(sw)
            a(f"v_lshrrev_b32 {v(t)}, 3, {v(lane)}\nv_lshrrev_b32 {v(t+1)}, 4, {v(lane)}\nv_and_b32 {v(t+2)}, 7, {v(lane)}")
            a(f"v_xor_b32 {v(t+2)}, {v(t+2)}, {v(t+1)}\nv_mul_u32_u24 {v(t)}, 1280, {v(t)}\nv_add_u32 {v(t)}, {s(sT0)}, {v(t)}")
            a(f"v_lshl_add_u32 {v(vA)}, {v(t+2)}, 4, {v(t)}\nv_xor_b32 {v(t+2)}, 4, {v(t+2)}\nv_lshl_add_u32 {v(vB)}, {v(t+2)}, 4, {v(t)}")
            a(f"v_add_u32 {v(vB)}, {8*1280}, {v(vB)}\nv_add_u32 {v(HB)}, {16*1280}, {v(vA)}\nv_add_u32 {v(HB+1)}, {16*1280}, {v(vB)}")
        XA = (vA, vB, HB, HB + 1)
        def xdirect(): xaddr(sWave)
        a(f"s_cmp_ge_u32 {s(sWave)}, 4\ns_cbranch_scc1 Lxw")
        a(f"s_cmp_ge_u32 s2, 100\ns_cbranch_scc1 Lg1a")
        self.gemv_issue(sB, sA, ACC + 16, ACC + 32, t, 4)
        a.label("Lg1a")
        a(f"s_cmp_ge_u32 {s(sC_)}, 40\ns_cbranch_scc1 Lw1a")
        a(f"v_and_b32 {v(t)}, 15, {v(lane)}\nv_min_u32 {v(t)}, 14, {v(t)}\nv_mul_u32_u24 {v(t+1)}, 52, {v(t)}\nv_lshrrev_b32 {v(t+1)}, 8, {v(t+1)}")
        a(f"v_mul_u32_u24 {v(t+1)}, 1200, {v(t+1)}\nv_lshl_add_u32 {v(t)}, {v(t)}, 4, {v(t+1)}")
        a(f"v_lshrrev_b32 {v(t+1)}, 4, {v(lane)}\nv_mul_u32_u24 {v(t+1)}, 3840, {v(t+1)}")
        a(f"s_mul_i32 {s(sT0)}, {s(sC_)}, {16*3840}\ns_mul_i32 {s(sT1)}, {s(sM)}, 80\ns_add_u32 {s(sT0)}, {s(sT0)}, {s(sT1)}")
        a(f"v_add3_u32 {v(t)}, {v(t)}, {v(t+1)}, {s(sT0)}")
        a(f"s_lshl_b32 {s(sT0)}, {s(sWave)}, 12\ns_add_u32 m0, {s(sT0)}, {L_X}\ns_nop 0")
        for i in range(4):
            a(f"global_load_lds_dwordx4 {v(t)}, {s(P_WQKV,2)}")
            if i < 3: a(f"v_add_u32 {v(t)}, {4*3840}, {v(t)}\ns_add_u32 m0, m0, 1024\ns_nop 0")
        a.label("Lw1a")
        a("s_barrier")
        a(f"s_waitcnt lgkmcnt(0)\ns_mul_i32 {s(sN)}, {s(sN)}, 0x9E3779B1\ns_add_u32 {s(sN)}, {s(sN)}, 0x7F4A7C15")
        a(f"s_cmp_ge_u32 s2, 100\ns_cbranch_scc1 Lg1b")
        a(f"s_cmp_ge_u32 {s(sC_)}, 40\ns_cbranch_scc1 Lg1c\ns_waitcnt vmcnt(4)\ns_branch Lg1d")
        a.label("Lg1c")
        a("s_waitcnt vmcnt(0)")
        a.label("Lg1d")
        self.gemv_math(ACC + 16, ACC + 32, ACC, t, 4)
        a(f"v_mov_b32 {v(t)}, 1\nv_mov_b32 {v(t+1)}, {L_BAD+4}\ns_waitcnt lgkmcnt(0)\ns_mov_b64 {s(sEx,2)}, exec\ns_mov_b64 exec, 1")
        a(f"ds_add_rtn_u32 {v(t)}, {v(t+1)}, {v(t)}\ns_waitcnt lgkmcnt(0)\ns_mov_b64 exec, {s(sEx,2)}\nv_readfirstlane_b32 {s(sT3)}, {v(t)}")
        a(f"s_cmp_lg_u32 {s(sT3)}, 3\ns_cbranch_scc1 Lg1b")
        a(f"s_mul_i32 {s(sT0)}, {s(sA)}, 5120\ns_lshl_b32 {s(sT1)}, {s(sB)}, 1\ns_add_u32 {s(sT0)}, {s(sT0)}, {s(sT1)}\ns_add_u32 {s(sT2)}, {s(sT0)}, {MP1:#x}")
        self.gemv_final(sT2, ACC, t, 4)
        a("s_waitcnt vmcnt(0)")
        self.flag_store(F0, 2, 128, t)
        a.label("Lg1b")
        a(f"s_cmp_ge_u32 {s(sC_)}, 40\ns_cbranch_scc1 Lw1b")
        a(f"v_lshrrev_b32 {v(t)}, 5, {v(lane)}\nv_lshlrev_b32 {v(t)}, 3, {v(t)}\nv_bfe_u32 {v(t+1)}, {v(lane)}, 2, 2\nv_add_u32 {v(t)}, {v(t)}, {v(t+1)}")
        a(f"s_lshl_b32 {s(sT0)}, {s(sWave)}, 12\ns_add_u32 {s(sT0)}, {s(sT0)}, {L_X}\nv_lshl_add_u32 {v(t)}, {v(t)}, 8, {s(sT0)}")
        a(f"v_bfe_u32 {v(t+1)}, {v(lane)}, 4, 1\nv_and_b32 {v(t+2)}, 3, {v(lane)}")
        a(f"v_mul_u32_u24 {v(t+3)}, 40, {v(t+1)}\nv_lshl_add_u32 {v(t+3)}, {v(t+2)}, 3, {v(t+3)}\nv_add_u32 {v(t+3)}, {v(t+3)}, {v(t)}")
        a(f"v_lshl_add_u32 {v(t+1)}, {v(t+1)}, 2, {v(t+2)}\nv_or_b32 {v(t+1)}, 0x0c0c0c00, {v(t+1)}")
        tab = [20, 22, 21, 23, 24, 14, 4, 4]
        lo = sum(x << (8 * i) for i, x in enumerate(tab[:4])); hi = sum(x << (8 * i) for i, x in enumerate(tab[4:]))
        a(f"s_mov_b32 {s(sT1)}, {hi:#x}\nv_mov_b32 {v(t+2)}, {lo:#x}\nv_perm_b32 {v(t+1)}, {s(sT1)}, {v(t+2)}, {v(t+1)}")
        a(f"v_lshl_add_u32 {v(t+1)}, {v(t+1)}, 3, {v(t)}")
        a("s_waitcnt vmcnt(0)")
        for T, (va, off) in enumerate(((t+3, 0), (t+3, 80), (t+1, 0), (t+1, 40))):
            for jj in range(2):
                a(f"ds_read_b64_tr_b16 {v(WF+4*T+2*jj,2)}, {v(va)} offset:{off + jj*1024}")
        a(f"s_mul_i32 {s(sT3)}, {s(sM)}, 40\ns_add_u32 {s(sT3)}, {s(sT3)}, {s(sC_)}\ns_lshl_b32 {s(sT0)}, {s(sT3)}, 12\ns_add_u32 {s(sT0)}, {s(sT0)}, {WQF:#x}")
        a(f"v_lshlrev_b32 {v(t)}, 4, {v(lane)}")
        for T in range(4):
            a(f"s_waitcnt lgkmcnt({6-2*T})\nbuffer_store_dwordx4 {v(WF+4*T,4)}, {v(t)}, {s(SRD,4)}, {s(sT0)} offen offset:{T*1024} sc1")
        xdirect()
        a("s_waitcnt vmcnt(0)")
        self.flag_store(FW, sT3, 128, t)
        a("s_branch Lj0")
        a.label("Lw1b")
        xdirect()
        a("s_branch Lj0")
        a.label("Lxw")
        a(f"s_sub_u32 {s(sT2)}, {s(sWave)}, 4")
        xaddr(sT2)
        a(f"v_and_b32 {v(t)}, 31, {v(lane)}\nv_mul_u32_u24 {v(t)}, 1280, {v(t)}\nv_lshrrev_b32 {v(t+1)}, 5, {v(lane)}\nv_mul_u32_u24 {v(t+1)}, 640, {v(t+1)}")
        a(f"v_add3_u32 {v(t)}, {v(t)}, {v(t+1)}, {s(sT0)}\nglobal_load_dword {v(HB+2)}, {v(t)}, {s(P_X,2)} offset:512")
        a(f"s_lshl_b32 {s(sD)}, {s(sT2)}, 14\ns_add_u32 {s(sD)}, {s(sD)}, {L_BIG}")
        first = True
        for kh in range(2):
            for L in range(4):
                for i in range(4):
                    src = kh * 640 + L * 128
                    ldsoff = kh * 65536 + L * 4096 + i * 1024
                    a(f"s_add_u32 m0, {s(sD)}, {ldsoff - src}\ns_nop 0")
                    a(f"global_load_lds_dwordx4 {v(XA[i])}, {s(P_X,2)} offset:{src}")
                    if first: a("s_barrier"); first = False
        for r_ in XA: a(f"v_add_u32 {v(r_)}, 640, {v(r_)}")
        a(f"s_cmp_lg_u32 {s(sWave)}, 7\ns_cbranch_scc1 Lcw")
        a("s_getpc_b64 s[40:41]")
        a.label("Lpc")
        a(f"s_lshr_b32 {s(sT0)}, s2, 3\ns_lshl_b32 {s(sT0)}, {s(sT0)}, 11\nv_lshl_add_u32 {v(t)}, {v(lane)}, 4, {s(sT0)}")
        a(f"v_min_u32 {v(t)}, Lcode_end-Lpc-2048, {v(t)}")
        a(f"global_load_dwordx4 {v(SF,4)}, {v(t)}, s[40:41]\nglobal_load_dwordx4 {v(SF+4,4)}, {v(t)}, s[40:41] offset:1024")
        a.label("Lcw")
        a(f"s_waitcnt lgkmcnt(0)\ns_mul_i32 {s(sN)}, {s(sN)}, 0x9E3779B1\ns_add_u32 {s(sN)}, {s(sN)}, 0x7F4A7C15")
        a.label("Lj0")
        S1, S2 = vst, vst + 1
        a(f"v_mov_b32 {v(S1)}, 0\nv_mov_b32 {v(S2)}, 0\nv_mov_b32 {v(vst+2)}, 0\nv_mov_b32 {v(vst+3)}, 0\ns_mov_b32 {s(sT5)}, 0x3f803f80")
        a(f"s_and_b32 {s(sT0)}, {s(sWave)}, 3\ns_lshl_b32 {s(sT0)}, {s(sT0)}, 14\ns_lshr_b32 {s(sT1)}, {s(sWave)}, 2\ns_lshl_b32 {s(sT1)}, {s(sT1)}, 16")
        a(f"s_add_u32 {s(sD)}, {s(sT0)}, {s(sT1)}\ns_add_u32 {s(sD)}, {s(sD)}, {L_BIG}")
        a(f"v_and_b32 {v(t)}, 31, {v(lane)}\nv_bfe_u32 {v(t+1)}, {v(lane)}, 1, 3\nv_lshrrev_b32 {v(t+2)}, 5, {v(lane)}\nv_xor_b32 {v(t+1)}, {v(t+1)}, {v(t+2)}")
        a(f"v_lshl_add_u32 {v(t)}, {v(t)}, 7, {s(sD)}")
        for q in range(4):
            a(f"v_xor_b32 {v(t+2)}, {2*q}, {v(t+1)}\nv_lshl_add_u32 {v(t+4+q)}, {v(t+2)}, 4, {v(t)}")
        a("s_waitcnt vmcnt(0)\ns_barrier")
        for L in range(4):
            for q in range(4):
                a(f"ds_read_b128 {v(X+4*(4*L+q),4)}, {v(t+4+q)} offset:{L*4096}")
        def stats(lo_, hi_):
            for r in range(lo_, hi_):
                k = 2 * (r & 1)
                a(f"v_dot2_f32_bf16 {v(S1+k)}, {v(X+r)}, {s(sT5)}, {v(S1+k)}\nv_dot2_f32_bf16 {v(S2+k)}, {v(X+r)}, {v(X+r)}, {v(S2+k)}")
        a("s_waitcnt lgkmcnt(12)")
        for i in range(4):
            a(f"s_add_u32 m0, {s(sD)}, {i*1024 - 512}\ns_nop 0\nglobal_load_lds_dwordx4 {v(XA[i])}, {s(P_X,2)} offset:512")
        for L in range(4):
            if L: a(f"s_waitcnt lgkmcnt({12-4*L})")
            stats(16 * L, 16 * L + 16)
        a("s_waitcnt vmcnt(0)")
        for q in range(4): a(f"ds_read_b128 {v(X+64+4*q,4)}, {v(t+4+q)}")
        a("s_waitcnt lgkmcnt(0)")
        stats(64, 80)
        a(f"s_nop 2\nv_add_f32 {v(S1)}, {v(S1)}, {v(vst+2)}\nv_add_f32 {v(S2)}, {v(S2)}, {v(vst+3)}")
        a(f"v_mov_b32 {v(vst+2)}, {v(S1)}\nv_mov_b32 {v(vst+3)}, {v(S2)}\ns_nop 1")
        a(f"v_permlane32_swap_b32 {v(S1)}, {v(vst+2)}\nv_permlane32_swap_b32 {v(S2)}, {v(vst+3)}")
        a(f"v_add_f32 {v(S1)}, {v(S1)}, {v(vst+2)}\nv_add_f32 {v(S2)}, {v(S2)}, {v(vst+3)}")
        a(f"s_lshl_b32 {s(sT0)}, {s(sWave)}, 9\ns_add_u32 {s(sT0)}, {s(sT0)}, {L_X+12288}\nv_lshl_add_u32 {v(t)}, {v(lane)}, 3, {s(sT0)}")
        a(f"ds_write_b64 {v(t)}, {v(S1,2)}\nv_xor_b32 {v(t)}, 2048, {v(t)}\ns_waitcnt lgkmcnt(0)\ns_barrier")
        a(f"ds_read_b64 {v(vst+2,2)}, {v(t)}\ns_waitcnt lgkmcnt(0)")
        a(f"v_add_f32 {v(S1)}, {v(S1)}, {v(vst+2)}\nv_add_f32 {v(S2)}, {v(S2)}, {v(vst+3)}")
        a(f"v_mul_f32 {v(S1)}, {f2u(1/640):#x}, {v(S1)}\nv_mul_f32 {v(S2)}, {f2u(1/640):#x}, {v(S2)}")
        a(f"v_fma_f32 {v(S2)}, -{v(S1)}, {v(S1)}, {v(S2)}\nv_max_f32 {v(S2)}, 0, {v(S2)}\nv_add_f32 {v(S2)}, {f2u(1e-5):#x}, {v(S2)}")
        a(f"v_rsq_f32 {v(vst+2)}, {v(S2)}\ns_nop 0\nv_mov_b32 {v(vst+3)}, {v(vst+2)}")
        a(f"v_mul_f32 {v(S1)}, {v(S1)}, {v(vst+2)}\nv_sub_f32 {v(S1)}, 0, {v(S1)}\nv_mov_b32 {v(S2)}, {v(S1)}")
        def norm(lo_, hi_):
            for r in range(lo_, hi_):
                u = t + 2 * (r & 1)
                a(f"v_lshlrev_b32 {v(u)}, 16, {v(X+r)}\nv_and_b32 {v(u+1)}, 0xffff0000, {v(X+r)}")
                a(f"v_pk_fma_f32 {v(u,2)}, {v(u,2)}, {v(vst+2,2)}, {v(vst,2)}\nv_cvt_pk_bf16_f32 {v(X+r)}, {v(u)}, {v(u+1)}")
        a(f"s_cmp_lg_u32 {s(sWave)}, 0\ns_cbranch_scc1 Lp0")
        a(f"v_lshlrev_b32 {v(t+4)}, 7, {v(lane)}\nv_min_u32 {v(t+5)}, {35*128}, {v(t+4)}\nv_min_u32 {v(t+6)}, {39*128}, {v(t+4)}")
        a(f"v_add_u32 {v(t+4)}, {F0:#x}, {v(t+4)}\nv_add_u32 {v(t+5)}, {F0+64*128:#x}, {v(t+5)}")
        a(f"s_mul_i32 {s(sT0)}, {s(sM)}, {40*128}\ns_add_u32 {s(sT0)}, {s(sT0)}, {FW:#x}\nv_add_u32 {v(t+6)}, {s(sT0)}, {v(t+6)}")
        def cmp3():
            for j in range(3): a(f"v_xor_b32 {v(t+j)}, {s(sN)}, {v(t+j)}")
            a(f"v_or3_b32 {v(t)}, {v(t)}, {v(t+1)}, {v(t+2)}\nv_cmp_ne_u32 vcc, 0, {v(t)}")
        self.poll([(t+4, t), (t+5, t+1), (t+6, t+2)], cmp3, "0")
        a("s_branch Lp0b")
        a.label("Lp0")
        norm(0, NORM_A)
        a.label("Lp0b")
        a("s_barrier")
        self.stamp("f0seen")
        PT = WF
        a(f"v_lshlrev_b32 {v(vA)}, 4, v0\nv_cmp_gt_u32 vcc, 320, v0\ns_and_saveexec_b64 {s(sEx,2)}, vcc\ns_cbranch_execz Lmp1")
        a(f"s_mov_b32 {s(sT0)}, {MP1:#x}")
        for i in range(5):
            a(f"buffer_load_dwordx4 {v(PT+4*i,4)}, {v(vA)}, {s(SRD,4)}, {s(sT0)} offen sc1")
            if i < 4: a(f"s_add_u32 {s(sT0)}, {s(sT0)}, 5120")
        a.label("Lmp1")
        a(f"s_mov_b64 exec, {s(sEx,2)}")
        a(f"v_lshlrev_b32 {v(vB)}, 4, {v(lane)}\nv_lshlrev_b32 {v(t+6)}, 4, {v(lane)}")
        a(f"s_lshr_b32 {s(sT0)}, {s(sWave)}, 2\ns_mul_i32 {s(sT0)}, {s(sT0)}, 20\ns_and_b32 {s(sT1)}, {s(sWave)}, 3\ns_add_u32 {s(sT0)}, {s(sT0)}, {s(sT1)}")
        a(f"s_mul_i32 {s(sT1)}, {s(sM)}, 40\ns_add_u32 {s(sT0)}, {s(sT0)}, {s(sT1)}\ns_lshl_b32 {s(sA)}, {s(sT0)}, 12\ns_add_u32 {s(sA)}, {s(sA)}, {WQF:#x}")
        a(f"s_lshl_b32 {s(sB)}, {s(sWave)}, 12\ns_add_u32 {s(sB)}, {s(sB)}, {L_BIG}")
        def wdma(gr):
            o = f"s_add_u32 {s(sT0)}, {s(sA)}, {gr*16384}\ns_add_u32 m0, {s(sB)}, {(gr%3)*32768}\ns_nop 0\n"
            for i in range(4): o += f"buffer_load_dwordx4 {v(t+6)}, {s(SRD,4)}, {s(sT0)} offen offset:{i*1024} sc1 lds\n"
            return o
        a(wdma(0))
        a(f"s_cmp_lg_u32 {s(sWave)}, 0\ns_cbranch_scc1 Lp0c")
        norm(0, NORM_A)
        a.label("Lp0c")
        norm(NORM_A, NORM_B)
        a(f"v_cmp_gt_u32 vcc, 320, v0\ns_and_saveexec_b64 {s(sEx,2)}, vcc\ns_cbranch_execz Lmp2")
        a(f"s_waitcnt vmcnt(4)")
        for j in range(4):
            a(f"v_add_f32 {v(PT+j)}, {v(PT+j)}, {v(PT+4+j)}\nv_add_f32 {v(PT+8+j)}, {v(PT+8+j)}, {v(PT+12+j)}")
            a(f"v_add_f32 {v(PT+j)}, {v(PT+j)}, {v(PT+16+j)}\nv_add_f32 {v(PT+j)}, {v(PT+j)}, {v(PT+8+j)}")
        a(f"v_cmp_le_u32 vcc, 160, v0\nv_mov_b32 {v(t+2)}, 1.0\ns_nop 0\nv_cndmask_b32 {v(t+2)}, 0, {v(t+2)}, vcc")
        for j in (0, 2):
            a(f"v_cvt_pk_bf16_f32 {v(t)}, {v(PT+j)}, {v(PT+j+1)}\nv_lshlrev_b32 {v(PT+j)}, 16, {v(t)}\nv_and_b32 {v(PT+j+1)}, 0xffff0000, {v(t)}")
            a(f"v_add_f32 {v(PT+j)}, {v(PT+j)}, {v(t+2)}\nv_add_f32 {v(PT+j+1)}, {v(PT+j+1)}, {v(t+2)}")
            a(f"v_cvt_pk_bf16_f32 {v(t)}, {v(PT+j)}, {v(PT+j+1)}\nv_lshlrev_b32 {v(PT+j)}, 16, {v(t)}\nv_and_b32 {v(PT+j+1)}, 0xffff0000, {v(t)}")
        a(f"v_add_u32 {v(t)}, {L_S}, {v(vA)}\nv_add_u32 {v(t+1)}, {L_G-2560}, {v(vA)}\nv_cndmask_b32 {v(t)}, {v(t)}, {v(t+1)}, vcc")
        a(f"ds_write_b128 {v(t)}, {v(PT,4)}")
        a.label("Lmp2")
        a(f"s_mov_b64 exec, {s(sEx,2)}")
        a(wdma(1)); a(wdma(2))
        side = self.sj1_issue()
        norm(NORM_B, 80)
        a(f"s_waitcnt vmcnt({8+side}) lgkmcnt(0)\ns_barrier")
        self.stamp("p1go")
        a(f"v_bfe_u32 {v(t)}, {v(lane)}, 3, 1\nv_lshlrev_b32 {v(t)}, 4, {v(t)}\nv_lshrrev_b32 {v(t+1)}, 5, {v(lane)}\nv_lshl_add_u32 {v(t)}, {v(t+1)}, 3, {v(t)}")
        a(f"v_and_b32 {v(t+2)}, 7, {v(lane)}\nv_add_u32 {v(t)}, {v(t)}, {v(t+2)}")
        a(f"s_lshr_b32 {s(sT0)}, {s(sWave)}, 2\ns_mul_i32 {s(sT1)}, {s(sT0)}, 1280\ns_add_u32 {s(sT1)}, {s(sT1)}, {L_G}\nv_lshl_add_u32 {v(t)}, {v(t)}, 2, {s(sT1)}")
        for i in range(10): a(f"ds_read_b32 {v(GD+i)}, {v(t)} offset:{128*i}")
        a(f"s_add_u32 {s(sT1)}, {s(sT1)}, {L_S-L_G}\nv_lshl_add_u32 {v(vA)}, {v(t+1)}, 5, {s(sT1)}")
        a(f"s_lshl_b32 {s(sT0)}, {s(sT0)}, 14\ns_add_u32 {s(sT0)}, {s(sT0)}, {L_BIG}\nv_add_u32 {v(vB)}, {s(sT0)}, {v(vB)}")
        vW2 = t + 7
        a(f"v_add_u32 {v(vW2)}, 65536, {v(vB)}")
        sc = Sched()
        def ldS(u, j): sc.lds(f"ds_read_b128 {v(SF+8*(u&1)+4*j,4)}, {v(vA)} offset:{u*64+16*j}", f"S{u}_{j}")
        def xform(u):
            out = []
            sf = SF + 8 * (u & 1); hb = HB + 4 * (u & 1); g = GD + (u >> 1)
            D = "row_mask:0xf bank_mask:0xf"
            for j in (0, 2):
                x = X + 4 * u + j; n = 8 * (u & 1) + 2 * j
                out.append((f"v_lshlrev_b32 {v(t)}, 16, {v(x)}\nv_and_b32 {v(t+1)}, 0xffff0000, {v(x)}", None))
                out.append((f"v_lshlrev_b32 {v(t+2)}, 16, {v(x+1)}\nv_and_b32 {v(t+3)}, 0xffff0000, {v(x+1)}", None))
                out.append((f"v_fmac_f32_dpp {v(sf+2*j)}, {v(g)}, {v(t)} row_newbcast:{n} {D}\nv_fmac_f32_dpp {v(sf+2*j+1)}, {v(g)}, {v(t+1)} row_newbcast:{n+1} {D}", f"S{u}_{j>>1}"))
                out.append((f"v_fmac_f32_dpp {v(sf+2*j+2)}, {v(g)}, {v(t+2)} row_newbcast:{n+2} {D}\nv_fmac_f32_dpp {v(sf+2*j+3)}, {v(g)}, {v(t+3)} row_newbcast:{n+3} {D}", None))
                out.append((f"v_cvt_pk_bf16_f32 {v(hb+j)}, {v(sf+2*j)}, {v(sf+2*j+1)}", None))
                out.append((f"v_cvt_pk_bf16_f32 {v(hb+j+1)}, {v(sf+2*j+2)}, {v(sf+2*j+3)}", None))
            return out
        def emit_x(lst):
            for txt, tag in lst:
                if tag: sc.use(txt, [tag])
                else: sc.op(txt)
        def ldW1(u, T):
            gr, up = divmod(u, 4); slot = gr % 3
            off = slot * 32768 + up * 4096 + T * 1024
            va = vB
            if off >= 65536: va, off = vW2, off - 65536
            sc.lds(f"ds_read_b128 {v(WF+16*(u&1)+4*T,4)}, {v(va)} offset:{off}", f"W{u}_{T}")
        ldS(0, 0); ldS(0, 1); ldS(1, 0); ldS(1, 1)
        for T in range(4): ldW1(0, T)
        emit_x(xform(0))
        sc.op("s_nop 0")
        for u in range(20):
            nb = u + 1 < 20 and (u + 1) % 4 == 0
            xn = xform(u + 1) if u + 1 < 20 else []
            if u % 4 == 0: sc.op(f"s_setprio 2")
            if u % 4 == 2: sc.op(f"s_setprio 0")
            for T in range(4):
                c = "0" if u == 0 else v(ACC+16*T,16)
                sc.use(f"v_mfma_f32_32x32x16_bf16 {v(ACC+16*T,16)}, {v(WF+16*(u&1)+4*T,4)}, {v(HB+4*(u&1),4)}, {c}", [f"W{u}_{T}"])
                if nb and T == 0:
                    g2 = (u + 1) // 4
                    n_after = {1: 4 + side, 2: 4 + side, 3: 4, 4: 0}[g2]
                    sc.op(f"s_waitcnt vmcnt({n_after}) lgkmcnt(0)\ns_barrier\ns_setprio 3")
                if u + 1 < 20: ldW1(u + 1, T)
                emit_x(xn[3*T:3*T+3])
                if u == 18 and T == 3: sc.op("s_nop 0")
                if u + 2 < 20 and T in (1, 3): ldS(u + 2, T >> 1)
                if nb and g2 in (1, 2) and T == 3: sc.op(wdma(g2 + 2))
        sc.op("s_setprio 0")
        sc.render(a, loop=False)
        self.stamp("p1loop")
        a("s_nop 7\ns_barrier")
        a(f"s_lshl_b32 {s(sT0)}, {s(sWave)}, 13\ns_add_u32 {s(sT0)}, {s(sT0)}, {L_BIG+32768}\nv_lshl_add_u32 {v(vA)}, {v(lane)}, 4, {s(sT0)}")
        a(f"s_xor_b32 {s(sT1)}, {s(sWave)}, 4\ns_lshl_b32 {s(sT1)}, {s(sT1)}, 13\ns_add_u32 {s(sT1)}, {s(sT1)}, {L_BIG+32768}\nv_lshl_add_u32 {v(vB)}, {v(lane)}, 4, {s(sT1)}")
        a(f"s_cmp_ge_u32 {s(sWave)}, 4\ns_cbranch_scc1 Lx1")
        send0 = [8, 12, 24, 28, 48, 52, 56, 60]; send1 = [0, 4, 16, 20, 32, 36, 40, 44]
        for i, r in enumerate(send0): a(f"ds_write_b128 {v(vA)}, {v(ACC+r,4)} offset:{i*1024}")
        a("s_branch Lx2")
        a.label("Lx1")
        for i, r in enumerate(send1): a(f"ds_write_b128 {v(vA)}, {v(ACC+r,4)} offset:{i*1024}")
        for i, r in enumerate(send0):
            for j in range(4): a(f"v_mov_b32 {v(ACC+send1[i]+j)}, {v(ACC+r+j)}")
        a.label("Lx2")
        a("s_waitcnt lgkmcnt(0)\ns_barrier")
        for i in range(8): a(f"ds_read_b128 {v(X+4*i,4)}, {v(vB)} offset:{i*1024}")
        def add(i, wait):
            a(f"s_waitcnt lgkmcnt({wait})")
            for j in range(4): a(f"v_add_f32 {v(ACC+send1[i]+j)}, {v(ACC+send1[i]+j)}, {v(X+4*i+j)}")
        for i in range(8): add(i, 7 - i)
        Qv, Kv, Mv = ACC, ACC + 16, ACC + 32
        o = X + 32
        for j in range(4): a(f"v_cvt_pk_bf16_f32 {v(o+j)}, {v(Kv+2*j)}, {v(Kv+2*j+1)}")
        for j in range(4): a(f"v_cvt_pk_bf16_f32 {v(o+4+j)}, {v(Mv+2*j)}, {v(Mv+2*j+1)}")
        for j in range(2): a(f"v_cvt_pk_bf16_f32 {v(o+8+j)}, {v(Mv+8+2*j)}, {v(Mv+9+2*j)}")
        a(f"v_mov_b32 {v(o+10)}, 0x3f80\nv_mov_b32 {v(o+11)}, 0")
        a(f"s_lshl_b32 {s(sT0)}, {s(sM)}, 4\ns_add_u32 {s(sT0)}, {s(sT0)}, {s(sTb)}\ns_mul_i32 {s(sT0)}, {s(sT0)}, {SLOT}\ns_add_u32 {s(sT0)}, {s(sT0)}, {KV - L_BIG:#x}")
        a(f"s_lshr_b32 {s(sT1)}, {s(sWave)}, 2\ns_mul_i32 {s(sT1)}, {s(sT1)}, {HOFF}\ns_add_u32 {s(sT4)}, {s(sT1)}, {L_BIG}")
        a(f"s_and_b32 {s(sT1)}, {s(sWave)}, 3\ns_lshl_b32 {s(sT2)}, {s(sT1)}, 10\ns_add_u32 {s(sT2)}, {s(sT2)}, {s(sT4)}")
        a(f"s_mul_i32 {s(sT1)}, {s(sT1)}, {32*ROWB}\ns_add_u32 {s(sT1)}, {s(sT1)}, {s(sT4)}\ns_add_u32 {s(sT1)}, {s(sT1)}, 4096")
        a(f"v_and_b32 {v(t+1)}, 31, {v(lane)}\nv_mul_u32_u24 {v(t+1)}, {ROWB}, {v(t+1)}\nv_add_u32 {v(t+1)}, {s(sT1)}, {v(t+1)}")
        a(f"v_lshrrev_b32 {v(t+2)}, 5, {v(lane)}\nv_lshl_add_u32 {v(t+2)}, {v(t+2)}, 4, {v(t+1)}")
        a(f"v_lshl_add_u32 {v(t+3)}, {v(lane)}, 4, {s(sT2)}\nv_lshl_add_u32 {v(t+4)}, {v(lane)}, 4, {s(sT1)}")
        a(f"ds_write2_b64 {v(t+2)}, {v(o+4,2)}, {v(o+6,2)} offset0:0 offset1:1")
        a(f"ds_write_b64 {v(t+2)}, {v(o+8,2)} offset:32\nds_write_b64 {v(t+1)}, {v(o+10,2)} offset:40")
        a(f"ds_write_b128 {v(t+3)}, {v(o,4)}")
        a(f"buffer_store_dwordx4 {v(o,4)}, {v(t+3)}, {s(SRD,4)}, {s(sT0)} offen sc1")
        a(f"s_waitcnt lgkmcnt(1)\nds_read_b128 {v(o+20,4)}, {v(t+4)}\nds_read_b128 {v(o+24,4)}, {v(t+4)} offset:1024")
        a(f"s_waitcnt lgkmcnt(1)\nbuffer_store_dwordx4 {v(o+20,4)}, {v(t+4)}, {s(SRD,4)}, {s(sT0)} offen sc1")
        a(f"s_mov_b32 exec_hi, 0xffff\ns_waitcnt lgkmcnt(0)\nbuffer_store_dwordx4 {v(o+24,4)}, {v(t+4)}, {s(SRD,4)}, {s(sT0)} offen offset:1024 sc1\ns_mov_b64 exec, -1")
        a(f"v_lshlrev_b32 {v(t)}, 4, {v(lane)}")
        a(f"s_mov_b32 {s(sT3)}, {f2u(20**-0.5*LOG2E):#x}")
        for j in range(8): a(f"v_mul_f32 {v(Qv+j)}, {s(sT3)}, {v(Qv+j)}")
        for j in range(4): a(f"v_mul_f32 {v(Mv+12+j)}, {s(sT3)}, {v(Mv+12+j)}")
        for j in range(4): a(f"v_cvt_pk_bf16_f32 {v(o+12+j)}, {v(Qv+2*j)}, {v(Qv+2*j+1)}")
        for j in range(2): a(f"v_cvt_pk_bf16_f32 {v(o+16+j)}, {v(Mv+12+2*j)}, {v(Mv+13+2*j)}")
        a(f"s_lshl_b32 {s(sT0)}, {s(sWave)}, 10\ns_add_u32 {s(sT0)}, {s(sT0)}, {L_X}\nv_add_u32 {v(t)}, {s(sT0)}, {v(t)}")
        a(f"ds_write_b128 {v(t)}, {v(o+12,4)}")
        a(f"s_lshl_b32 {s(sT0)}, {s(sWave)}, 8\ns_add_u32 {s(sT0)}, {s(sT0)}, {L_X+8192}\nv_and_b32 {v(t+1)}, 31, {v(lane)}\nv_lshl_add_u32 {v(t+1)}, {v(t+1)}, 3, {s(sT0)}")
        a(f"ds_write_b64 {v(t+1)}, {v(o+16,2)}")
        a("s_waitcnt vmcnt(0) lgkmcnt(0)\ns_barrier")
        a(f"s_cmp_lg_u32 {s(sWave)}, 0\ns_cbranch_scc1 Lf1")
        self.flag_store(F1, sId, 128, t)
        a.label("Lf1")
        self.stamp("f1")
        R.free("X", "ACC", "GD", "WF", "SF", "HB", "vA", "vB", "vst")

    def sj1_issue(self):
        a, R = self.a, self.R
        t, lane = R["t"], R["lane"]
        U, st, cg = sT2, sT3, sT4
        a.c("side job 1: loads")
        a(f"s_lshl_b32 {s(U)}, s2, 3\ns_add_u32 {s(U)}, {s(U)}, {s(sWave)}")
        a(f"v_lshrrev_b32 {v(t)}, 3, {v(lane)}\nv_and_b32 {v(t+1)}, 7, {v(lane)}\nv_lshlrev_b32 {v(t+1)}, 4, {v(t+1)}")
        a(f"s_lshl_b32 {s(sT0)}, {s(sWave)}, 12\ns_add_u32 m0, {s(sT0)}, {L_SCR}")
        def four(pa, pb, inc):
            for i in range(4):
                if i: a(f"v_add_u32 {v(t)}, {(inc[i]-inc[i-1]) & 0xffffffff:#x}, {v(t)}\ns_add_u32 m0, m0, 1024\ns_nop 0")
                a(f"global_load_lds_dwordx4 {v(t)}, {s(pa if i < 2 else pb, 2)}")
        a(f"s_cmp_ge_u32 {s(U)}, 1080\ns_cbranch_scc1 Lsj_d")
        a(f"s_mul_i32 {s(st)}, {s(U)}, 2428\ns_lshr_b32 {s(st)}, {s(st)}, 16\ns_mul_i32 {s(sT0)}, {s(st)}, 27\ns_sub_u32 {s(cg)}, {s(U)}, {s(sT0)}")
        a(f"s_mul_i32 {s(sT0)}, {s(st)}, {16*3456}\ns_lshl_b32 {s(sT1)}, {s(cg)}, 7\ns_add_u32 {s(sT0)}, {s(sT0)}, {s(sT1)}")
        a(f"v_mul_u32_u24 {v(t)}, 3456, {v(t)}\nv_add3_u32 {v(t)}, {v(t)}, {v(t+1)}, {s(sT0)}")
        four(P_WG, P_WU, (0, 8*3456, 0, 8*3456))
        a(f"s_mul_i32 {s(sJd)}, {s(cg)}, 160\ns_add_u32 {s(sJd)}, {s(sJd)}, {s(st)}\ns_lshl_b32 {s(sJd)}, {s(sJd)}, 10\ns_add_u32 {s(sJd)}, {s(sJd)}, {WGF:#x}")
        a(f"s_mov_b32 {s(sJs)}, 40960\ns_mov_b32 {s(sJt)}, 0\ns_branch Lsj_e")
        a.label("Lsj_d")
        a(f"s_cmp_ge_u32 {s(U)}, 1620\ns_cbranch_scc1 Lsj_o")
        a(f"s_sub_u32 {s(U)}, {s(U)}, 1080\ns_mul_i32 {s(st)}, {s(U)}, 6554\ns_lshr_b32 {s(st)}, {s(st)}, 16\ns_mul_i32 {s(sT0)}, {s(st)}, 10\ns_sub_u32 {s(cg)}, {s(U)}, {s(sT0)}")
        a(f"s_mul_i32 {s(sT0)}, {s(st)}, {32*1280}\ns_lshl_b32 {s(sT1)}, {s(cg)}, 7\ns_add_u32 {s(sT0)}, {s(sT0)}, {s(sT1)}")
        a(f"v_mul_u32_u24 {v(t)}, 1280, {v(t)}\nv_add3_u32 {v(t)}, {v(t)}, {v(t+1)}, {s(sT0)}")
        four(P_WD, P_WD, (0, 10240, 20480, 30720))
        a(f"s_mul_i32 {s(sJd)}, {s(cg)}, 216\ns_add_u32 {s(sJd)}, {s(sJd)}, {s(st)}\ns_lshl_b32 {s(sJd)}, {s(sJd)}, 10\ns_add_u32 {s(sJd)}, {s(sJd)}, {WDF:#x}")
        a(f"s_mov_b32 {s(sJs)}, 55296\ns_mov_b32 {s(sJt)}, 1\ns_branch Lsj_e")
        a.label("Lsj_o")
        a(f"s_cmp_ge_u32 {s(U)}, 1820\ns_cselect_b32 {s(sJt)}, 2, 1\ns_min_u32 {s(U)}, {s(U)}, 1819")
        a(f"s_sub_u32 {s(U)}, {s(U)}, 1620\ns_mul_i32 {s(st)}, {s(U)}, 6554\ns_lshr_b32 {s(st)}, {s(st)}, 16\ns_mul_i32 {s(sT0)}, {s(st)}, 10\ns_sub_u32 {s(cg)}, {s(U)}, {s(sT0)}")
        a(f"s_mul_i32 {s(sJd)}, {s(cg)}, 80\ns_add_u32 {s(sJd)}, {s(sJd)}, {s(st)}\ns_lshl_b32 {s(sJd)}, {s(sJd)}, 10\ns_add_u32 {s(sJd)}, {s(sJd)}, {WOF:#x}")
        a(f"s_mov_b32 {s(sJs)}, 20480\ns_lshl_b32 {s(sT1)}, {s(cg)}, 7\ns_cmp_ge_u32 {s(st)}, 16\ns_cbranch_scc1 Lsj_r")
        a(f"s_mul_i32 {s(sT0)}, {s(st)}, {40*1280}\ns_add_u32 {s(sT0)}, {s(sT0)}, {s(sT1)}")
        a(f"v_mul_u32_u24 {v(t)}, 1280, {v(t)}\nv_add3_u32 {v(t)}, {v(t)}, {v(t+1)}, {s(sT0)}")
        four(P_WO, P_WO, (0, 8*1280, 20*1280, 28*1280))
        a("s_branch Lsj_e")
        a.label("Lsj_r")
        a(f"s_sub_u32 {s(st)}, {s(st)}, 16\ns_mul_i32 {s(sT0)}, {s(st)}, {160*1280}\ns_add_u32 {s(sT0)}, {s(sT0)}, {16*1280}\ns_add_u32 {s(sT0)}, {s(sT0)}, {s(sT1)}")
        a(f"v_and_b32 {v(t)}, 3, {v(t)}\nv_lshrrev_b32 {v(t+2)}, 5, {v(lane)}\nv_mul_u32_u24 {v(t+2)}, 20, {v(t+2)}\nv_add_u32 {v(t)}, {v(t)}, {v(t+2)}")
        a(f"v_mul_u32_u24 {v(t)}, 1280, {v(t)}\nv_add3_u32 {v(t)}, {v(t)}, {v(t+1)}, {s(sT0)}")
        four(P_WO, P_WO, (0, 40*1280, 80*1280, 120*1280))
        a.label("Lsj_e")
        a(f"s_min_u32 {s(sT2)}, s2, 199\ns_mul_i32 {s(sT3)}, {s(sT2)}, 1639\ns_lshr_b32 {s(sT3)}, {s(sT3)}, 16\ns_mul_i32 {s(sT0)}, {s(sT3)}, 40\ns_sub_u32 {s(sT2)}, {s(sT2)}, {s(sT0)}")
        a(f"s_mul_i32 {s(sG2)}, {s(sT3)}, 10240\ns_lshl_b32 {s(sT0)}, {s(sT2)}, 8\ns_add_u32 {s(sG2)}, {s(sG2)}, {s(sT0)}\ns_add_u32 {s(sG2)}, {s(sG2)}, {MP2:#x}")
        a(f"s_lshl_b32 {s(sT2)}, {s(sT2)}, 7\ns_add_u32 {s(sT2)}, {s(sT2)}, 2560")
        self.gemv_issue(sT2, sT3, R["gW"], R["gC"], t, 2)
        return 8
    def sj1_work(self, tmp):
        a, R = self.a, self.R
        t, lane = R["t"], R["lane"]
        a.c("side job 1: transpose + publish")
        a(f"s_cmp_eq_u32 {s(sJt)}, 2\ns_cbranch_scc1 Lsw_e")
        a(f"v_bfe_u32 {v(t)}, {v(lane)}, 4, 1\nv_lshrrev_b32 {v(t+1)}, 5, {v(lane)}\ns_cmp_eq_u32 {s(sJt)}, 0\ns_cselect_b32 {s(sT0)}, 4, 2\ns_cselect_b32 {s(sT1)}, 2, 4")
        a(f"v_lshlrev_b32 {v(t)}, {s(sT0)}, {v(t)}\nv_lshlrev_b32 {v(t+1)}, {s(sT1)}, {v(t+1)}\nv_bfe_u32 {v(t+2)}, {v(lane)}, 2, 2\nv_add3_u32 {v(t)}, {v(t)}, {v(t+1)}, {v(t+2)}")
        a(f"s_lshl_b32 {s(sT0)}, {s(sWave)}, 12\ns_add_u32 {s(sT0)}, {s(sT0)}, {L_SCR}\nv_lshl_add_u32 {v(t)}, {v(t)}, 7, {s(sT0)}")
        a(f"v_and_b32 {v(t+1)}, 3, {v(lane)}\nv_lshl_add_u32 {v(t)}, {v(t+1)}, 3, {v(t)}")
        for T in range(4):
            for jj in range(2): a(f"ds_read_b64_tr_b16 {v(tmp+4*T+2*jj,2)}, {v(t)} offset:{T*32 + jj*1024}")
        a(f"v_lshlrev_b32 {v(t+1)}, 4, {v(lane)}")
        for T in range(4):
            a(f"s_waitcnt lgkmcnt({6-2*T})\nbuffer_store_dwordx4 {v(tmp+4*T,4)}, {v(t+1)}, {s(SRD,4)}, {s(sJd)} offen sc1")
            if T < 3: a(f"s_add_u32 {s(sJd)}, {s(sJd)}, {s(sJs)}")
        a.label("Lsw_e")
        self.gemv_math(R["gW"], R["gC"], tmp + 16, t, 2)
    def last_arriver(self, off, n, label):
        a, R = self.a, self.R; t = R["t"]
        a(f"v_mov_b32 {v(t)}, 1\nv_mov_b32 {v(t+1)}, {off}\ns_waitcnt lgkmcnt(0)\ns_mov_b64 exec, 1")
        a(f"ds_add_rtn_u32 {v(t)}, {v(t+1)}, {v(t)}\ns_waitcnt lgkmcnt(0)\ns_mov_b64 exec, -1\nv_readfirstlane_b32 {s(sT3)}, {v(t)}")
        a(f"s_cmp_lg_u32 {s(sT3)}, {n-1}\ns_cbranch_scc1 {label}")
    def poll16(self, base, which, label, minval=None, extra=None):
        a, R = self.a, self.R; lane = R["lane"]; p = 132
        a(f"v_and_b32 {v(p)}, 15, {v(lane)}")
        if which == "row": a(f"s_lshl_b32 {s(sT0)}, {s(sTb)}, 11\nv_lshlrev_b32 {v(p)}, 7, {v(p)}")
        else: a(f"s_lshl_b32 {s(sT0)}, {s(sM)}, 7\nv_lshlrev_b32 {v(p)}, 11, {v(p)}")
        a(f"s_add_u32 {s(sT0)}, {s(sT0)}, {base:#x}\nv_add_u32 {v(p)}, {s(sT0)}, {v(p)}")
        if extra: extra(p)
        if minval is None:
            cmp = lambda: a(f"v_cmp_ne_u32 vcc, {s(sN)}, {v(p+1)}")
        else:
            cmp = lambda: a(f"v_subrev_u32 {v(p+1)}, {s(sN)}, {v(p+1)}\nv_subrev_u32 {v(p+1)}, {minval}, {v(p+1)}\nv_cmp_lt_u32 vcc, {7-minval}, {v(p+1)}")
        self.poll([(p, p + 1)], cmp, label)

    def pin_list(self, fp):
        nf = 3 - fp
        wo = [("o", f, i) for i in range(5) for f in range(nf)]
        wd = [("d", f, j) for j in range(14) for f in range(nf)]
        return wo, wd
    def wo_off(self, fp, f, i):
        return ((3 * fp + f) * 20 + (4 * i if i < 4 else 16)) * 1024
    def wd_off(self, fp, f, j):
        return ((3 * fp + f) * 54 + 8 * (j >> 1) + (j & 1)) * 1024

    def p2(self):
        a, R = self.a, self.R
        t, lane = R["t"], R["lane"]
        S = S_AT
        R.alloc("Qr", 2, at=10); R.alloc("Qm", 8, at=12); R.alloc("SA", 32, at=20); R.alloc("SB", 32, at=52); R.alloc("O", 32, at=84)
        R.alloc("Km", 4, at=116); R.alloc("V", 8, at=120); R.alloc("KR", 4, at=128)
        self.sj1_work(PIN)
        for n, r in (("vK", t + 2), ("vR", t + 3), ("vV", t + 4), ("vDma", t + 5), ("vM", t + 6), ("vT0", 134)): R.names[n] = (r, 1)
        a(f"s_lshr_b32 {s(sT0)}, {s(sWave)}, 2\ns_mul_i32 {s(S['sHH'])}, {s(sT0)}, {HOFF}\ns_add_u32 {s(S['sHH'])}, {s(S['sHH'])}, {L_BIG}")
        a(f"s_bfe_u32 {s(S['sKH'])}, {s(sWave)}, 0x10001\ns_mul_i32 {s(S['sKV'])}, {s(sM)}, {16*SLOT}\ns_add_u32 {s(S['sKV'])}, {s(S['sKV'])}, {KV:#x}")
        a(f"s_and_b32 {s(sT1)}, {s(sWave)}, 1\ns_lshl_b32 {s(sT1)}, {s(sT1)}, 1\ns_lshl_b32 {s(sT0)}, {s(sT0)}, 2\ns_add_u32 {s(sT0)}, {s(sT0)}, {s(sT1)}")
        a(f"s_lshl_b32 {s(sT1)}, {s(sT0)}, 10\ns_add_u32 {s(sT1)}, {s(sT1)}, {L_X}\nv_lshl_add_u32 {v(132)}, {v(lane)}, 4, {s(sT1)}")
        a(f"s_lshl_b32 {s(sT1)}, {s(sT0)}, 8\ns_add_u32 {s(sT1)}, {s(sT1)}, {L_X+8192}\nv_lshl_add_u32 {v(133)}, {v(lane)}, 3, {s(sT1)}")
        a(f"ds_read_b128 {v(R['Qm'],4)}, v132\nds_read_b128 {v(R['Qm']+4,4)}, v132 offset:1024\nds_read_b64 {v(R['Qr'],2)}, v133")
        attn.attn_setup(a, R, S, L_BIG)
        a(attn.dma_skip(S))
        a(f"s_cmp_lg_u32 {s(sWave)}, 0\ns_cbranch_scc1 Lq1")
        self.poll16(F1, "col", "1")
        a.label("Lq1")
        a("s_barrier")
        self.stamp("f1seen")
        a(attn.dma_chunk(R, S, SRD))
        a("s_waitcnt vmcnt(3)")
        self.last_arriver(L_BAD + 8, 8, "Lq2")
        a(f"s_cmp_ge_u32 s2, 200\ns_cbranch_scc1 Lq3")
        self.gemv_final(sG2, PIN, t, 8)
        a.label("Lq3")
        a("s_waitcnt vmcnt(0)")
        self.flag_store(FR, 2, 4, t)
        a.label("Lq2")
        attn.attn_head(a, R)
        NROLL = 4
        attn.attn_loop(a, R, S, SRD, "fast", NROLL)
        a(f"s_and_b32 {s(sT0)}, {s(sM)}, 7\ns_and_b32 {s(sT1)}, {s(sWave)}, 3\ns_mul_i32 {s(sA)}, {s(sT0)}, 100\ns_add_u32 {s(sA)}, {s(sA)}, {s(sT1)}\ns_lshl_b32 {s(sA)}, {s(sA)}, 10\ns_add_u32 {s(sA)}, {s(sA)}, {WOF:#x}")
        a(f"s_mul_i32 {s(sB)}, {s(sT0)}, 270\ns_lshl_b32 {s(sT1)}, {s(sT1)}, 1\ns_add_u32 {s(sB)}, {s(sB)}, {s(sT1)}\ns_lshl_b32 {s(sB)}, {s(sB)}, 10\ns_add_u32 {s(sB)}, {s(sB)}, {WDF:#x}")
        a(f"s_sub_u32 {s(sC_)}, {s(sB)}, {s(sA)}\ns_lshr_b32 {s(sD)}, {s(sWave)}, 2\ns_mov_b32 {s(sT5)}, {FR:#x}")
        vD = R["vDma"]
        attn.attn_trip(a, R, S, SRD, "fast", [f"buffer_load_dwordx4 {v(PIN,4)}, {v(vD)}, {s(SRD,4)}, {s(sT5)} offen sc1"])
        L1, L2 = "Lfr1", "Lfr2"
        a(f"s_mov_b32 {s(sPoll)}, {POLL_MAX}\ns_waitcnt vmcnt(3)")
        a.label(L1)
        for j in range(4): a(f"v_xor_b32 {v(PIN+j)}, {s(sN)}, {v(PIN+j)}")
        a(f"v_or3_b32 {v(PIN)}, {v(PIN)}, {v(PIN+1)}, {v(PIN+2)}\nv_or_b32 {v(PIN)}, {v(PIN)}, {v(PIN+3)}\nv_cmp_ne_u32 vcc, 0, {v(PIN)}\ns_cbranch_vccz {L2}")
        a(f"buffer_load_dwordx4 {v(PIN,4)}, {v(vD)}, {s(SRD,4)}, {s(sT5)} offen sc1\ns_waitcnt vmcnt(0)")
        a(f"s_sub_u32 {s(sPoll)}, {s(sPoll)}, 1\ns_cmp_gt_i32 {s(sPoll)}, 0\ns_cbranch_scc1 {L1}")
        a.label(L2)
        loads = []
        for n in range(30):
            offs = []
            for fp in range(2):
                wo, wd = self.pin_list(fp)
                if n < len(wo): offs.append((0, self.wo_off(fp, *wo[n][1:])))
                else: offs.append((1, self.wd_off(fp, *wd[n - 10][1:])))
            txt = f"s_cmp_lg_u32 {s(sD)}, 0\ns_mov_b32 {s(sT4)}, {offs[0][1]:#x}\ns_cmov_b32 {s(sT4)}, {offs[1][1]:#x}\n"
            if offs[0][0] != offs[1][0]: txt += f"s_cselect_b32 {s(sT3)}, {s(sB)}, {s(sA)}\ns_add_u32 {s(sT4)}, {s(sT4)}, {s(sT3)}\n"
            else: txt += f"s_add_u32 {s(sT4)}, {s(sT4)}, {s(sB if offs[0][0] else sA)}\n"
            txt += f"buffer_load_dwordx4 {v(PIN+4*n,4)}, {v(vD)}, {s(SRD,4)}, {s(sT4)} offen sc1"
            loads.append(txt)
        for c in range(NROLL + 1, 16):
            k = c - NROLL - 1
            attn.attn_trip(a, R, S, SRD, "fast", loads[3*k:3*k+3], dodma=(c + 2 < 16))
        attn.attn_tail(a, R, "fast")
        self.stamp("attn")
        self.p2_finish(first=True)
        a.label("Lo_done")
        a(f"s_cmp_lg_u32 {s(sWave)}, 0\ns_cbranch_scc1 Lf2")
        self.flag_store(F2, sId, 128, 132)
        a.label("Lf2")
        self.stamp("f2")
        for n in ("vK", "vR", "vV", "vDma", "vM", "vT0"): del R.names[n]
        R.free("Qr", "Qm", "SA", "SB", "O", "Km", "V", "KR", "gW", "gC")
        R.alloc("PINW", 80, at=PIN + 40)

    def p2_finish(self, first):
        a, R = self.a, self.R
        lane = R["lane"]; O = R["O"]; SA = R["SA"]; u = 132
        sfx = "a" if first else "b"
        a(f"s_mul_i32 {s(sT0)}, {s(sWave)}, 3072\ns_add_u32 {s(sT0)}, {s(sT0)}, {L_OX}\nv_lshl_add_u32 {v(u)}, {v(lane)}, 4, {s(sT0)}")
        a(f"s_xor_b32 {s(sT1)}, {s(sWave)}, 2\ns_mul_i32 {s(sT1)}, {s(sT1)}, 3072\ns_add_u32 {s(sT1)}, {s(sT1)}, {L_OX}\nv_lshl_add_u32 {v(u+1)}, {v(lane)}, 4, {s(sT1)}")
        a(f"s_nop 6\ns_cmp_lg_u32 {s(S_AT['sKH'])}, 0\ns_cbranch_scc1 Lox1{sfx}")
        for i in range(3): a(f"ds_write_b128 {v(u)}, {v(O+16+4*i,4)} offset:{i*1024}")
        a(f"s_branch Lox2{sfx}")
        a.label(f"Lox1{sfx}")
        for i in range(3): a(f"ds_write_b128 {v(u)}, {v(O+4*i,4)} offset:{i*1024}")
        for i in range(12): a(f"v_mov_b32 {v(O+i)}, {v(O+16+i)}")
        a.label(f"Lox2{sfx}")
        a("s_waitcnt lgkmcnt(0)\ns_barrier")
        for i in range(3): a(f"ds_read_b128 {v(SA+4*i,4)}, {v(u+1)} offset:{i*1024}")
        a(f"s_and_b32 {s(sT0)}, {s(sWave)}, 1\ns_lshl_b32 {s(sT0)}, {s(sT0)}, 1\ns_add_u32 {s(sT0)}, {s(sT0)}, {s(S_AT['sKH'])}\ns_lshl_b32 {s(sT1)}, {s(sTb)}, 2\ns_add_u32 {s(sT0)}, {s(sT0)}, {s(sT1)}")
        a(f"s_mul_i32 {s(sT0)}, {s(sT0)}, 40960\ns_add_u32 {s(sT0)}, {s(sT0)}, {OF:#x}")
        a(f"s_lshr_b32 {s(sT1)}, {s(sWave)}, 2\ns_lshl_b32 {s(sT2)}, {s(sM)}, 1\ns_add_u32 {s(sT1)}, {s(sT1)}, {s(sT2)}")
        a(f"s_lshl_b32 {s(sT2)}, {s(sT1)}, 10\ns_add_u32 {s(sT2)}, {s(sT2)}, {s(sT0)}\ns_lshl_b32 {s(sT1)}, {s(sT1)}, 8\ns_add_u32 {s(sT1)}, {s(sT1)}, {s(sT0)}\ns_add_u32 {s(sT1)}, {s(sT1)}, 32768")
        a("s_waitcnt lgkmcnt(0)")
        for i in range(12): a(f"v_add_f32 {v(O+i)}, {v(O+i)}, {v(SA+i)}")
        l = SA + 12
        a(f"v_mov_b32 {v(l)}, {v(O+8)}\nv_mov_b32 {v(l+1)}, {v(O+8)}\ns_nop 1\nv_permlane32_swap_b32 {v(l)}, {v(l+1)}")
        a(f"v_rcp_f32 {v(l)}, {v(l+1)}\ns_nop 0")
        for i in range(12): a(f"v_mul_f32 {v(O+i)}, {v(O+i)}, {v(l)}")
        for j in range(6): a(f"v_cvt_pk_bf16_f32 {v(SA+j)}, {v(O+2*j)}, {v(O+2*j+1)}")
        a(f"v_lshlrev_b32 {v(u)}, 4, {v(lane)}\nv_lshlrev_b32 {v(u+1)}, 3, {v(lane)}")
        a(f"buffer_store_dwordx4 {v(SA,4)}, {v(u)}, {s(SRD,4)}, {s(sT2)} offen sc1")
        a(f"s_mov_b32 exec_hi, 0\nbuffer_store_dwordx2 {v(SA+4,2)}, {v(u+1)}, {s(SRD,4)}, {s(sT1)} offen sc1\ns_mov_b32 exec_hi, -1")
        if first:
            for i in range(1, 12): a(f"v_add_f32 {v(O)}, {v(O)}, {v(O+i)}")
            a(f"v_mov_b32 {v(u)}, 0x5f800000\nv_cmp_nle_f32 vcc, {v(l+1)}, {v(u)}\nv_mov_b32 {v(u)}, 0x1f800000\nv_cmp_nge_f32 s[40:41], {v(l+1)}, {v(u)}\ns_or_b64 vcc, vcc, s[40:41]")
            a(f"v_mov_b32 {v(u)}, 0x207\nv_cmp_class_f32 s[40:41], {v(O)}, {v(u)}\ns_or_b64 vcc, vcc, s[40:41]\ns_cbranch_vccz Lokay")
            a(f"v_mov_b32 {v(u)}, 1\nv_mov_b32 {v(u+1)}, {L_BAD}\nds_write_b32 {v(u+1)}, {v(u)}")
            a.label("Lokay")
            a(f"s_waitcnt vmcnt(0) lgkmcnt(0)\ns_barrier\nv_mov_b32 {v(u+1)}, {L_BAD}\nds_read_b32 {v(u)}, {v(u+1)}\ns_waitcnt lgkmcnt(0)\nv_readfirstlane_b32 {s(sT0)}, {v(u)}")
            a(f"s_cmp_lg_u32 {s(sT0)}, 0\ns_cbranch_scc1 Lslow")
        else:
            a("s_waitcnt vmcnt(0)\ns_barrier\ns_branch Lo_done")

    def slow_path(self, regs):
        a, R = self.a, self.R
        old = dict(R.names); R.names.update(regs)
        S = S_AT; vM = R["vM"]; lane = R["lane"]
        a.label("Lslow")
        for mode in ("max", "sub"):
            attn.attn_setup(a, R, S, L_BIG)
            a(attn.dma_chunk(R, S, SRD)); a(attn.dma_chunk(R, S, SRD))
            if mode == "max": a(f"v_mov_b32 {v(vM)}, 0xff7fffff\nv_mov_b32 {v(vM+1)}, 0xff7fffff")
            a("s_waitcnt vmcnt(3)\ns_barrier")
            attn.attn_head(a, R)
            attn.attn_loop(a, R, S, SRD, mode, 16)
            attn.attn_tail(a, R, mode)
            a("s_waitcnt vmcnt(0)")
            if mode == "max":
                u = 132
                a(f"v_mov_b32 {v(u)}, {v(vM)}\nv_mov_b32 {v(u+1)}, {v(vM+1)}\ns_nop 1\nv_permlane32_swap_b32 {v(u)}, {v(vM)}\nv_permlane32_swap_b32 {v(u+1)}, {v(vM+1)}")
                a(f"v_max_f32 {v(vM)}, {v(vM)}, {v(u)}\nv_max_f32 {v(vM+1)}, {v(vM+1)}, {v(u+1)}")
                a(f"s_lshl_b32 {s(sT0)}, {s(sWave)}, 9\ns_add_u32 {s(sT0)}, {s(sT0)}, {L_OX}\nv_lshl_add_u32 {v(u)}, {v(lane)}, 3, {s(sT0)}")
                a(f"ds_write_b64 {v(u)}, {v(vM,2)}\nv_xor_b32 {v(u)}, 1024, {v(u)}\ns_waitcnt lgkmcnt(0)\ns_barrier")
                a(f"ds_read_b64 {v(u,2)}, {v(u)}\ns_waitcnt lgkmcnt(0)\nv_max_f32 {v(vM)}, {v(vM)}, {v(u)}\nv_max_f32 {v(vM+1)}, {v(vM+1)}, {v(u+1)}")
                a("s_barrier")
        self.p2_finish(first=False)
        R.names.clear(); R.names.update(old)

    def tok_addr(self, dst, base, ttstride, qblocks, rem=None):
        a, R = self.a, self.R; lane = R["lane"]; t = R["t"]
        a(f"v_lshrrev_b32 {v(t)}, 5, {v(lane)}\nv_lshlrev_b32 {v(t)}, 10, {v(t)}\nv_bfe_u32 {v(t+1)}, {v(lane)}, 4, 1\nv_and_b32 {v(t+2)}, 15, {v(lane)}")
        if rem is not None:
            a(f"v_lshl_add_u32 {v(t+3)}, {v(t+1)}, 8, {v(t)}\nv_lshl_add_u32 {v(t+3)}, {v(t+2)}, 3, {v(t+3)}")
        a(f"v_lshl_add_u32 {v(t)}, {v(t+1)}, 9, {v(t)}\nv_lshl_add_u32 {v(t)}, {v(t+2)}, 4, {v(t)}")
        a(f"s_and_b32 {s(sT0)}, {s(sWave)}, 3\ns_mul_i32 {s(sT1)}, {s(sT0)}, {qblocks*1024}\ns_add_u32 {s(sT1)}, {s(sT1)}, {base}")
        for i in range(4):
            a(f"s_add_u32 {s(sT2)}, {s(sT0)}, {i}\ns_bfe_u32 {s(sT3)}, {s(sT2)}, 0x10001\ns_mul_i32 {s(sT3)}, {s(sT3)}, {ttstride}\ns_add_u32 {s(sT3)}, {s(sT3)}, {s(sT1)}\ns_and_b32 {s(sT2)}, {s(sT2)}, 1")
            a(f"s_lshl_b32 {s(sT4)}, {s(sT2)}, 8\ns_add_u32 {s(sT4)}, {s(sT4)}, {s(sT3)}\nv_add_u32 {v(dst+i)}, {s(sT4)}, {v(t)}")
            if rem is not None:
                a(f"s_lshl_b32 {s(sT4)}, {s(sT2)}, 7\ns_add_u32 {s(sT4)}, {s(sT4)}, {s(sT3)}\ns_add_u32 {s(sT4)}, {s(sT4)}, 32768\nv_add_u32 {v(rem+i)}, {s(sT4)}, {v(t+3)}")
    def reduce4(self, fp, ACC, tmp, va):
        a, R = self.a, self.R; lane = R["lane"]; nf = 3 - fp
        a(f"s_and_b32 {s(sT0)}, {s(sWave)}, 3")
        for i in range(4):
            slot = (3 - i) if i else 0
            a(f"s_add_u32 {s(sT1)}, {s(sT0)}, {i}\ns_and_b32 {s(sT1)}, {s(sT1)}, 3\ns_mul_i32 {s(sT1)}, {s(sT1)}, 3072\ns_add_u32 {s(sT1)}, {s(sT1)}, {L_PL + 3*fp*12288 + slot*1024}")
            a(f"v_lshl_add_u32 {v(va+i)}, {v(lane)}, 4, {s(sT1)}")
        for f in range(nf):
            for i in range(1, 4): a(f"ds_write_b128 {v(va+i)}, {v(ACC+(f*4+i)*4,4)} offset:{f*12288}")
        a("s_waitcnt lgkmcnt(0)\ns_barrier")
        for f in range(nf):
            for k in range(3): a(f"ds_read_b128 {v(tmp+(f*3+k)*4,4)}, {v(va)} offset:{f*12288 + k*1024}")
        for f in range(nf):
            a(f"s_waitcnt lgkmcnt({3*(nf-1-f)})")
            for j in range(4):
                d = ACC + f * 16 + j; x = tmp + f * 12 + j
                a(f"v_add_f32 {v(x)}, {v(x)}, {v(x+4)}\nv_add_f32 {v(d)}, {v(d)}, {v(x+8)}\nv_add_f32 {v(d)}, {v(d)}, {v(x)}")
    def row_col(self, dst, ptrcol):
        a, R = self.a, self.R; lane = R["lane"]; t = R["t"]
        a(f"s_lshl_b32 {s(sT0)}, {s(sTb)}, 7\ns_lshr_b32 {s(sT1)}, {s(sM)}, 3\ns_lshl_b32 {s(sT1)}, {s(sT1)}, 6\ns_add_u32 {s(sT0)}, {s(sT0)}, {s(sT1)}")
        a(f"s_and_b32 {s(sT1)}, {s(sWave)}, 3\ns_lshl_b32 {s(sT1)}, {s(sT1)}, 4\ns_add_u32 {s(sT0)}, {s(sT0)}, {s(sT1)}\ns_mul_i32 {s(sT0)}, {s(sT0)}, 1280")
        a(f"s_and_b32 {s(sT1)}, {s(sM)}, 7\ns_mul_i32 {s(sT1)}, {s(sT1)}, 160\ns_add_u32 {s(sT0)}, {s(sT0)}, {s(sT1)}\ns_lshr_b32 {s(sT1)}, {s(sWave)}, 2\ns_mul_i32 {s(sT1)}, {s(sT1)}, 96\ns_add_u32 {s(sT0)}, {s(sT0)}, {s(sT1)}")
        a(f"v_and_b32 {v(t)}, 15, {v(lane)}\nv_mul_u32_u24 {v(t)}, 1280, {v(t)}\nv_lshrrev_b32 {v(t+1)}, 4, {v(lane)}\nv_lshl_add_u32 {v(t)}, {v(t+1)}, 3, {v(t)}\nv_add_u32 {v(dst)}, {s(sT0)}, {v(t)}")

    def p3(self):
        a, R = self.a, self.R
        t, lane = R["t"], R["lane"]
        X1 = R.alloc("X1", 6, at=10)
        ACC = R.alloc("ACC", 48, at=16); TOK = R.alloc("TOK", 32, at=64); PT = R.alloc("PT", 20, at=96)
        vT = R.alloc("vT", 4, at=116); vRm = R.alloc("vRm", 4, at=120); vD = R.alloc("vD", at=135); vA = R.alloc("vA", at=125)
        UF = ACC
        a.c("window: tables, residual, u/v job")
        a(f"s_and_b32 {s(sT0)}, {s(sM)}, 7\ns_mul_i32 {s(sT0)}, {s(sT0)}, 320\ns_sub_u32 {s(sT1)}, {s(sT0)}, {320*16}\ns_add_u32 {s(sT2)}, {s(sT0)}, {7680-340*16}")
        a(f"v_mov_b32 {v(t)}, 2560\nv_mov_b32 {v(t+1)}, {s(sT1)}\nv_cmp_le_u32 vcc, 320, v0\nv_mov_b32 {v(t+2)}, {s(sT2)}\ns_nop 0\nv_cndmask_b32 {v(t)}, {v(t)}, {v(t+1)}, vcc")
        a(f"v_cmp_le_u32 vcc, 340, v0\ns_nop 1\nv_cndmask_b32 {v(t)}, {v(t)}, {v(t+2)}, vcc\nv_lshl_add_u32 {v(vA)}, v0, 4, {v(t)}")
        a(f"v_cmp_gt_u32 vcc, 360, v0\ns_and_saveexec_b64 {s(sEx,2)}, vcc\ns_cbranch_execz Lt1")
        a(f"s_mov_b32 {s(sT0)}, {MP2:#x}")
        for i in range(5):
            a(f"buffer_load_dwordx4 {v(PT+4*i,4)}, {v(vA)}, {s(SRD,4)}, {s(sT0)} offen sc1")
            if i < 4: a(f"s_add_u32 {s(sT0)}, {s(sT0)}, 10240")
        a.label("Lt1")
        a(f"s_mov_b64 exec, {s(sEx,2)}")
        a(f"v_lshlrev_b32 {v(vD)}, 4, {v(lane)}")
        a(f"s_cmp_ge_u32 s2, 108\ns_cbranch_scc1 Lu1")
        a(f"s_mul_i32 {s(sT0)}, s2, 40\ns_mul_i32 {s(sT1)}, {s(sWave)}, 5\ns_add_u32 {s(sT0)}, {s(sT0)}, {s(sT1)}\ns_lshl_b32 {s(sT0)}, {s(sT0)}, 10\ns_add_u32 {s(sT0)}, {s(sT0)}, {WGF:#x}")
        for i in range(4): a(f"buffer_load_dwordx4 {v(UF+4*i,4)}, {v(vD)}, {s(SRD,4)}, {s(sT0)} offen offset:{i*1024} sc1")
        a(f"s_add_u32 {s(sT0)}, {s(sT0)}, 4096\nbuffer_load_dwordx4 {v(UF+16,4)}, {v(vD)}, {s(SRD,4)}, {s(sT0)} offen sc1")
        a.label("Lu1")
        self.row_col(vA, None)
        a(f"s_cmp_ge_u32 {s(sWave)}, 4\ns_cbranch_scc1 Lx3\nglobal_load_dwordx2 {v(X1+4,2)}, {v(vA)}, {s(P_X,2)} offset:64")
        a.label("Lx3")
        for f in range(2): a(f"global_load_dwordx2 {v(X1+2*f,2)}, {v(vA)}, {s(P_X,2)} offset:{f*32}")
        self.tok_addr(vT, L_BIG, 40960, 2, rem=vRm)
        a(f"v_cmp_gt_u32 vcc, 360, v0\ns_and_saveexec_b64 {s(sEx,2)}, vcc\ns_cbranch_execz Lt2")
        a("s_waitcnt vmcnt(2)")
        for j in range(4):
            a(f"v_add_f32 {v(PT+j)}, {v(PT+j)}, {v(PT+4+j)}\nv_add_f32 {v(PT+8+j)}, {v(PT+8+j)}, {v(PT+12+j)}")
            a(f"v_add_f32 {v(PT+j)}, {v(PT+j)}, {v(PT+16+j)}\nv_add_f32 {v(PT+j)}, {v(PT+j)}, {v(PT+8+j)}")
        a(f"v_subrev_u32 {v(t+3)}, 160, v0\nv_cmp_gt_u32 vcc, 160, {v(t+3)}\nv_mov_b32 {v(t+2)}, 1.0\ns_nop 0\nv_cndmask_b32 {v(t+2)}, 0, {v(t+2)}, vcc")
        for j in (0, 2):
            o = PT + 4 + (j >> 1)
            a(f"v_cvt_pk_bf16_f32 {v(t)}, {v(PT+j)}, {v(PT+j+1)}\nv_lshlrev_b32 {v(PT+j)}, 16, {v(t)}\nv_and_b32 {v(PT+j+1)}, 0xffff0000, {v(t)}")
            a(f"v_add_f32 {v(PT+j)}, {v(PT+j)}, {v(t+2)}\nv_add_f32 {v(PT+j+1)}, {v(PT+j+1)}, {v(t+2)}")
            a(f"v_cvt_pk_bf16_f32 {v(o)}, {v(PT+j)}, {v(PT+j+1)}\nv_lshlrev_b32 {v(PT+j)}, 16, {v(o)}\nv_and_b32 {v(PT+j+1)}, 0xffff0000, {v(o)}")
        a(f"v_cndmask_b32 {v(t)}, v0, {v(t+3)}, vcc\nv_mov_b32 {v(t+1)}, {L_SB}\nv_cndmask_b32 {v(t+1)}, {v(t+1)}, {L_GB}, vcc".replace(f"v_cndmask_b32 {v(t+1)}, {v(t+1)}, {L_GB}, vcc", f"v_cndmask_b32 {v(t+1)}, {v(t+1)}, 0, vcc"))
        a(f"v_lshrrev_b32 {v(t+2)}, 2, {v(t)}\nv_lshl_add_u32 {v(t+1)}, {v(t+2)}, 5, {v(t+1)}\nv_and_b32 {v(t+2)}, 1, {v(t)}\nv_lshl_add_u32 {v(t+1)}, {v(t+2)}, 4, {v(t+1)}")
        a(f"v_bfe_u32 {v(t+2)}, {v(t)}, 1, 1\nv_lshl_add_u32 {v(t+1)}, {v(t+2)}, 3, {v(t+1)}")
        a(f"s_mov_b64 s[40:41], exec\nv_cmp_gt_u32 vcc, 320, v0\ns_and_b64 exec, exec, vcc\ns_cbranch_execz Lt3\nds_write_b64 {v(t+1)}, {v(PT+4,2)}")
        a.label("Lt3")
        a(f"s_andn2_b64 exec, s[40:41], vcc\ns_cbranch_execz Lt2")
        a(f"v_lshlrev_b32 {v(t)}, 4, v0\nv_add_u32 {v(t)}, {L_TA - 320*16}, {v(t)}\nds_write_b128 {v(t)}, {v(PT,4)}")
        a.label("Lt2")
        a(f"s_mov_b64 exec, {s(sEx,2)}\ns_waitcnt lgkmcnt(0)\ns_barrier")
        a(f"s_cmp_ge_u32 s2, 108\ns_cbranch_scc1 Lu2")
        a(f"v_and_b32 {v(t)}, 31, {v(lane)}\nv_lshrrev_b32 {v(t+1)}, 5, {v(lane)}\ns_mul_i32 {s(sT0)}, {s(sWave)}, 160\nv_lshl_add_u32 {v(t+1)}, {v(t+1)}, 4, {s(sT0)}")
        a(f"v_mul_u32_u24 {v(t+2)}, {L_SB}, {v(t)}\nv_add_u32 {v(t+1)}, {v(t+1)}, {v(t+2)}\nv_cmp_gt_u32 vcc, 2, {v(t)}")
        for i in range(20): a(f"v_mov_b32 {v(TOK+i)}, 0")
        a(f"s_and_saveexec_b64 {s(sEx,2)}, vcc")
        for i in range(5): a(f"ds_read_b128 {v(TOK+4*i,4)}, {v(t+1)} offset:{32*i}")
        a(f"s_mov_b64 exec, {s(sEx,2)}\ns_waitcnt vmcnt(0) lgkmcnt(0)")
        D = ACC + 24
        for i in range(5): a(f"v_mfma_f32_32x32x16_bf16 {v(D,16)}, {v(UF+4*i,4)}, {v(TOK+4*i,4)}, {'0' if i == 0 else v(D,16)}")
        a(f"s_lshl_b32 {s(sT0)}, {s(sWave)}, 8\ns_add_u32 {s(sT0)}, {s(sT0)}, {L_X}\nv_lshl_add_u32 {v(t+1)}, {v(t)}, 7, {s(sT0)}\nv_lshrrev_b32 {v(t+2)}, 5, {v(lane)}\nv_lshl_add_u32 {v(t+1)}, {v(t+2)}, 4, {v(t+1)}")
        a(f"s_nop 6\ns_and_saveexec_b64 {s(sEx,2)}, vcc")
        for g in range(4): a(f"ds_write_b128 {v(t+1)}, {v(D+4*g,4)} offset:{32*g}")
        a(f"s_mov_b64 exec, {s(sEx,2)}")
        self.last_arriver(L_BAD + 12, 8, "Lu2")
        a(f"v_lshlrev_b32 {v(t)}, 2, {v(lane)}\nv_add_u32 {v(t)}, {L_X}, {v(t)}")
        for i in range(4): a(f"ds_read2st64_b32 {v(D+2*i,2)}, {v(t)} offset0:{2*i} offset1:{2*i+1}")
        a("s_waitcnt lgkmcnt(0)")
        for j in (4, 2, 1):
            for i in range(j): a(f"v_add_f32 {v(D+i)}, {v(D+i)}, {v(D+i+j)}")
        a(f"v_mov_b32 {v(D+1)}, {v(D)}\ns_nop 1\nv_permlane32_swap_b32 {v(D)}, {v(D+1)}")
        for j in range(2):
            x = D + j; hi = D + 2 + j; lo = D + 4 + j
            a(f"v_cvt_pk_bf16_f32 {v(hi)}, {v(x)}, {v(x)}\nv_and_b32 {v(hi)}, 0xffff0000, {v(hi)}\nv_sub_f32 {v(lo)}, {v(x)}, {v(hi)}")
        o = D + 8
        a(f"v_cvt_pk_bf16_f32 {v(o)}, {v(D+2)}, {v(D+4)}\nv_cvt_pk_bf16_f32 {v(o+1)}, {v(D+2)}, {v(D+3)}\nv_cvt_pk_bf16_f32 {v(o+2)}, {v(D+5)}, {v(D+3)}\nv_mov_b32 {v(o+3)}, 0")
        a("s_mov_b32 exec_lo, 0")
        for j in range(3): a(f"v_mov_b32 {v(o+j)}, 0")
        a(f"s_mov_b32 exec_lo, -1\ns_lshl_b32 {s(sT0)}, s2, 10\ns_add_u32 {s(sT0)}, {s(sT0)}, {UVF:#x}")
        a(f"buffer_store_dwordx4 {v(o,4)}, {v(vD)}, {s(SRD,4)}, {s(sT0)} offen sc1\ns_waitcnt vmcnt(0)")
        self.flag_store(FU, 2, 128, t)
        a.label("Lu2")
        a(f"s_cmp_lg_u32 {s(sWave)}, 0\ns_cbranch_scc1 Lq4")
        self.poll16(F2, "row", "2")
        a.label("Lq4")
        a("s_barrier")
        self.stamp("f2seen")
        a(f"s_lshl_b32 {s(sT0)}, {s(sTb)}, 1\ns_lshr_b32 {s(sT1)}, {s(sM)}, 3\ns_add_u32 {s(sT0)}, {s(sT0)}, {s(sT1)}\ns_mul_i32 {s(sT0)}, {s(sT0)}, 81920\ns_add_u32 {s(sT0)}, {s(sT0)}, {OF:#x}")
        a(f"s_mul_i32 {s(sT1)}, {s(sWave)}, 10240\ns_add_u32 {s(sT0)}, {s(sT0)}, {s(sT1)}\ns_add_u32 m0, {s(sT1)}, {L_BIG}\ns_nop 0")
        for i in range(10):
            if i and i % 4 == 0: a(f"s_add_u32 {s(sT0)}, {s(sT0)}, 4096\ns_add_u32 m0, m0, 4096\ns_nop 0")
            a(f"buffer_load_dwordx4 {v(vD)}, {s(SRD,4)}, {s(sT0)} offen offset:{(i%4)*1024} sc1 lds")
        a("s_waitcnt vmcnt(0)\ns_barrier")
        self.stamp("oin")
        a(f"s_cmp_ge_u32 {s(sWave)}, 4\ns_cbranch_scc1 Lp3b")
        for fp in range(2):
            if fp: a.label("Lp3b")
            nf = 3 - fp
            sc = Sched()
            def ldT(i5):
                b = TOK + 16 * (i5 & 1)
                for i in range(4):
                    if i5 < 4: sc.lds(f"ds_read_b128 {v(b+4*i,4)}, {v(vT+i)} offset:{i5*8192}", f"T{i5}_{i}")
                    else: sc.lds(f"ds_read2_b64 {v(b+4*i,4)}, {v(vRm+i)} offset0:0 offset1:64", f"T{i5}_{i}")
            ldT(0)
            for i5 in range(5):
                if i5 < 4: ldT(i5 + 1)
                for i in range(4):
                    for f in range(nf):
                        d = ACC + (f * 4 + i) * 4
                        sc.use(f"v_mfma_f32_16x16x32_bf16 {v(d,4)}, {v(PIN+4*(i5*nf+f),4)}, {v(TOK+16*(i5&1)+4*i,4)}, {'0' if i5 == 0 else v(d,4)}", [f"T{i5}_{i}"])
            sc.render(a, loop=False)
            a("s_barrier")
            self.p4_tile_dma(0); self.p4_tile_dma(1)
            if fp == 0:
                for n in range(5):
                    _, f, j = self.pin_list(0)[1][n]
                    a(f"s_add_u32 {s(sT4)}, {s(sB)}, {self.wd_off(0, f, j):#x}\nbuffer_load_dwordx4 {v(PIN+40+4*n,4)}, {v(vD)}, {s(SRD,4)}, {s(sT4)} offen sc1")
            self.reduce4(fp, ACC, TOK, vT)
            GA = TOK; G2 = TOK + 12; S1, S2 = PT, PT + 1; XO = PT + 4
            a(f"v_lshrrev_b32 {v(t)}, 4, {v(lane)}\nv_lshlrev_b32 {v(t+1)}, 4, {v(t)}")
            for f in range(nf): a(f"ds_read_b128 {v(GA+4*f,4)}, {v(t+1)} offset:{L_TA + (3*fp+f)*64}")
            a(f"s_and_b32 {s(sT0)}, {s(sM)}, 7\ns_mul_i32 {s(sT0)}, {s(sT0)}, 160\nv_and_b32 {v(t+1)}, 1, {v(t)}\nv_lshl_add_u32 {v(t+1)}, {v(t+1)}, 4, {s(sT0)}\nv_lshrrev_b32 {v(t)}, 1, {v(t)}\nv_lshl_add_u32 {v(t+1)}, {v(t)}, 3, {v(t+1)}")
            for f in range(nf): a(f"ds_read_b64 {v(G2+2*f,2)}, {v(t+1)} offset:{L_GB + (3*fp+f)*32}")
            a(f"v_mov_b32 {v(S1)}, 0\nv_mov_b32 {v(S2)}, 0\ns_waitcnt lgkmcnt(0)")
            for f in range(nf):
                d = ACC + 16 * f
                for j in range(2):
                    x = X1 + 2 * f + j; g = G2 + 2 * f + j
                    a(f"v_lshlrev_b32 {v(t)}, 16, {v(x)}\nv_and_b32 {v(t+1)}, 0xffff0000, {v(x)}")
                    a(f"v_fmac_f32 {v(t)}, {v(GA+4*f+2*j)}, {v(d+2*j)}\nv_fmac_f32 {v(t+1)}, {v(GA+4*f+2*j+1)}, {v(d+2*j+1)}\nv_cvt_pk_bf16_f32 {v(x)}, {v(t)}, {v(t+1)}")
                    a(f"v_lshlrev_b32 {v(t)}, 16, {v(x)}\nv_and_b32 {v(t+1)}, 0xffff0000, {v(x)}\nv_lshlrev_b32 {v(t+2)}, 16, {v(g)}\nv_and_b32 {v(t+3)}, 0xffff0000, {v(g)}")
                    a(f"v_add_f32 {v(S1)}, {v(S1)}, {v(t)}\nv_fmac_f32 {v(S2)}, {v(t)}, {v(t)}\nv_add_f32 {v(S1)}, {v(S1)}, {v(t+1)}\nv_fmac_f32 {v(S2)}, {v(t+1)}, {v(t+1)}")
                    a(f"v_mul_f32 {v(t)}, {v(t)}, {v(t+2)}\nv_mul_f32 {v(t+1)}, {v(t+1)}, {v(t+3)}")
                    a(f"v_cvt_pk_bf16_f32 {v(XO+2*f+j)}, {v(t)}, {v(t+1)}")
            a(f"s_lshl_b32 {s(sT0)}, {s(sTb)}, 2\ns_lshr_b32 {s(sT1)}, {s(sM)}, 3\ns_lshl_b32 {s(sT1)}, {s(sT1)}, 1\ns_add_u32 {s(sT0)}, {s(sT0)}, {s(sT1)}\ns_bfe_u32 {s(sT1)}, {s(sWave)}, 0x10001\ns_add_u32 {s(sT2)}, {s(sT0)}, {s(sT1)}")
            a(f"s_mul_i32 {s(sT0)}, {s(sT2)}, 40\ns_and_b32 {s(sT3)}, {s(sM)}, 7\ns_mul_i32 {s(sT1)}, {s(sT3)}, 5\ns_add_u32 {s(sT0)}, {s(sT0)}, {s(sT1)}\ns_lshl_b32 {s(sT0)}, {s(sT0)}, 10\ns_add_u32 {s(sT0)}, {s(sT0)}, {XG + 3*fp*1024:#x}")
            a(f"s_and_b32 {s(sT1)}, {s(sWave)}, 1\ns_lshl_b32 {s(sT4)}, {s(sT1)}, 8\ns_add_u32 {s(sT0)}, {s(sT0)}, {s(sT4)}")
            a(f"v_and_b32 {v(t)}, 15, {v(lane)}\nv_lshlrev_b32 {v(t)}, 4, {v(t)}\nv_bfe_u32 {v(t+1)}, {v(lane)}, 4, 1\nv_lshl_add_u32 {v(t)}, {v(t+1)}, 9, {v(t)}\nv_lshrrev_b32 {v(t+1)}, 5, {v(lane)}\nv_lshl_add_u32 {v(t)}, {v(t+1)}, 10, {v(t)}")
            a(f"v_permlane32_swap_b32 {v(XO)}, {v(XO+2)}\nv_permlane32_swap_b32 {v(XO+1)}, {v(XO+3)}")
            a(f"buffer_store_dwordx4 {v(XO,4)}, {v(t)}, {s(SRD,4)}, {s(sT0)} offen sc1")
            if fp == 0:
                a(f"v_permlane32_swap_b32 {v(XO+4)}, {v(XO+6)}\nv_permlane32_swap_b32 {v(XO+5)}, {v(XO+7)}")
                a(f"s_mov_b32 exec_hi, 0\nbuffer_store_dwordx4 {v(XO+4,4)}, {v(t)}, {s(SRD,4)}, {s(sT0)} offen offset:2048 sc1\ns_mov_b32 exec_hi, -1")
            a(f"v_mov_b32 {v(PT+2)}, {v(S1)}\nv_mov_b32 {v(PT+3)}, {v(S2)}\ns_nop 1\nv_permlane32_swap_b32 {v(S1)}, {v(PT+2)}\nv_permlane32_swap_b32 {v(S2)}, {v(PT+3)}")
            a(f"v_add_f32 {v(S1)}, {v(S1)}, {v(PT+2)}\nv_add_f32 {v(S2)}, {v(S2)}, {v(PT+3)}\nv_mov_b32 {v(PT+2)}, {v(S1)}\nv_mov_b32 {v(PT+3)}, {v(S2)}\ns_nop 1")
            a(f"v_permlane16_swap_b32 {v(S1)}, {v(PT+2)}\nv_permlane16_swap_b32 {v(S2)}, {v(PT+3)}\nv_add_f32 {v(S1)}, {v(S1)}, {v(PT+2)}\nv_add_f32 {v(S2)}, {v(S2)}, {v(PT+3)}")
            a(f"s_lshl_b32 {s(sT2)}, {s(sT2)}, 12\ns_lshl_b32 {s(sT3)}, {s(sT3)}, 9\ns_add_u32 {s(sT2)}, {s(sT2)}, {s(sT3)}\ns_lshl_b32 {s(sT1)}, {s(sT1)}, 7\ns_add_u32 {s(sT2)}, {s(sT2)}, {s(sT1)}\ns_add_u32 {s(sT2)}, {s(sT2)}, {ST + fp*256:#x}")
            a(f"v_lshlrev_b32 {v(t)}, 3, {v(lane)}\ns_mov_b64 exec, 0xffff\nbuffer_store_dwordx2 {v(S1,2)}, {v(t)}, {s(SRD,4)}, {s(sT2)} offen sc1\ns_mov_b64 exec, -1")
            if fp == 0: a("s_branch Lp3e")
        a.label("Lp3e")
        a("s_waitcnt vmcnt(0)\ns_barrier")
        a(f"s_cmp_lg_u32 {s(sWave)}, 0\ns_cbranch_scc1 Lf3")
        self.flag_store(F3, sId, 128, t)
        a.label("Lf3")
        self.stamp("f3")
        R.free("ACC", "TOK", "PT", "vT", "vRm", "vA")

    def p4_tile_dma(self, j):
        a, R = self.a, self.R; vD = R["vD"]
        a(f"s_mul_i32 {s(sT0)}, {s(sM)}, 40\ns_mul_i32 {s(sT1)}, {s(sWave)}, 5\ns_add_u32 {s(sT0)}, {s(sT0)}, {s(sT1)}\ns_lshl_b32 {s(sT0)}, {s(sT0)}, 10\ns_add_u32 {s(sT0)}, {s(sT0)}, {WGF + j*16*40960:#x}")
        a(f"s_lshl_b32 {s(sT1)}, {s(sT1)}, 10\ns_add_u32 m0, {s(sT1)}, {L_BIG + (j%3)*40960}\ns_nop 0")
        for i in range(4): a(f"buffer_load_dwordx4 {v(vD)}, {s(SRD,4)}, {s(sT0)} offen offset:{i*1024} sc1 lds")
        a(f"s_add_u32 {s(sT0)}, {s(sT0)}, 4096\ns_add_u32 m0, m0, 4096\ns_nop 0\nbuffer_load_dwordx4 {v(vD)}, {s(SRD,4)}, {s(sT0)} offen sc1 lds")

    def p4(self):
        a, R = self.a, self.R
        t, lane, vD = R["t"], R["lane"], R["vD"]
        XR = R.alloc("XR", 80, at=16); AC = R.alloc("AC", 32, at=96); WF = R.alloc("WF", 12, at=136); RC = R.alloc("RC", 16, at=148)
        UT = R.alloc("UT", 4, at=164); UW = R.alloc("UW", 4, at=168); vW, vX, rs = t + 4, t + 5, t + 6
        E = R.alloc("E", 4, at=128); HO = R.alloc("HO", 4, at=172)
        self.p4_tile_dma(2)
        a(f"s_cmp_lg_u32 {s(sWave)}, 0\ns_cbranch_scc1 Lq5")
        def extra(p):
            a(f"v_subrev_u32 {v(p+1)}, 16, {v(lane)}\nv_lshl_add_u32 {v(p+2)}, {v(p+1)}, 4, {s(sM)}\nv_min_u32 {v(p+2)}, 107, {v(p+2)}\nv_lshlrev_b32 {v(p+2)}, 7, {v(p+2)}\nv_add_u32 {v(p+2)}, {FU:#x}, {v(p+2)}")
            a(f"v_cmp_gt_u32 vcc, 7, {v(p+1)}\ns_nop 1\nv_cndmask_b32 {v(p)}, {v(p)}, {v(p+2)}, vcc")
        self.poll16(F3, "row", "3", extra=extra)
        a.label("Lq5")
        a("s_barrier")
        self.stamp("f3seen")
        a(f"s_and_b32 {s(sT0)}, {s(sWave)}, 3\ns_lshl_b32 {s(sT1)}, {s(sTb)}, 2\ns_add_u32 {s(sC_)}, {s(sT0)}, {s(sT1)}")
        a(f"s_lshl_b32 {s(sT0)}, {s(sC_)}, 12\ns_add_u32 {s(sT0)}, {s(sT0)}, {ST:#x}\nv_and_b32 {v(t)}, 31, {v(lane)}\nv_lshlrev_b32 {v(t)}, 3, {v(t)}\nv_lshrrev_b32 {v(t+1)}, 5, {v(lane)}\nv_lshl_add_u32 {v(t)}, {v(t+1)}, 11, {v(t)}")
        for i in range(8): a(f"buffer_load_dwordx2 {v(RC+2*i,2)}, {v(t)}, {s(SRD,4)}, {s(sT0)} offen offset:{i*256} sc1")
        a(f"s_mul_i32 {s(sT0)}, {s(sC_)}, 40\ns_lshr_b32 {s(sT1)}, {s(sWave)}, 2\ns_mul_i32 {s(sT2)}, {s(sT1)}, 20\ns_add_u32 {s(sT0)}, {s(sT0)}, {s(sT2)}\ns_lshl_b32 {s(sT0)}, {s(sT0)}, 10\ns_add_u32 {s(sT0)}, {s(sT0)}, {XG:#x}")
        for u in range(20):
            if u and u % 4 == 0: a(f"s_add_u32 {s(sT0)}, {s(sT0)}, 4096")
            a(f"buffer_load_dwordx4 {v(XR+4*u,4)}, {v(vD)}, {s(SRD,4)}, {s(sT0)} offen offset:{(u%4)*1024} sc1")
        a(f"s_mul_i32 {s(sT2)}, {s(sT1)}, 20480\ns_add_u32 {s(sT2)}, {s(sT2)}, {L_BIG}\nv_add_u32 {v(vW)}, {s(sT2)}, {v(vD)}")
        a(f"s_and_b32 {s(sT0)}, {s(sWave)}, 3\ns_lshl_b32 {s(sT0)}, {s(sT0)}, 12\ns_add_u32 {s(sT0)}, {s(sT0)}, {L_X}\nv_add_u32 {v(vX)}, {s(sT0)}, {v(vD)}")
        a(f"s_mul_i32 {s(sA)}, {s(sC_)}, 108\ns_add_u32 {s(sA)}, {s(sA)}, {s(sM)}\ns_lshl_b32 {s(sA)}, {s(sA)}, 10\ns_add_u32 {s(sA)}, {s(sA)}, {HF:#x}")
        a(f"s_lshl_b32 {s(sD)}, {s(sM)}, 10\ns_add_u32 {s(sD)}, {s(sD)}, {UVF:#x}")
        a("s_waitcnt vmcnt(20)")
        for j in (4, 2, 1):
            for i in range(j): a(f"v_add_f32 {v(RC+2*i)}, {v(RC+2*i)}, {v(RC+2*i+2*j)}\nv_add_f32 {v(RC+2*i+1)}, {v(RC+2*i+1)}, {v(RC+2*i+1+2*j)}")
        a(f"v_mov_b32 {v(RC+2)}, {v(RC)}\nv_mov_b32 {v(RC+3)}, {v(RC+1)}\ns_nop 1\nv_permlane32_swap_b32 {v(RC)}, {v(RC+2)}\nv_permlane32_swap_b32 {v(RC+1)}, {v(RC+3)}")
        a(f"v_add_f32 {v(RC)}, {v(RC)}, {v(RC+2)}\nv_add_f32 {v(RC+1)}, {v(RC+1)}, {v(RC+3)}\nv_mul_f32 {v(RC)}, {f2u(-1/640):#x}, {v(RC)}\nv_mul_f32 {v(RC+1)}, {f2u(1/640):#x}, {v(RC+1)}")
        a(f"v_fma_f32 {v(RC+1)}, -{v(RC)}, {v(RC)}, {v(RC+1)}\nv_max_f32 {v(RC+1)}, 0, {v(RC+1)}\nv_add_f32 {v(RC+1)}, {f2u(1e-5):#x}, {v(RC+1)}")
        a(f"v_rsq_f32 {v(rs)}, {v(RC+1)}\ns_nop 0\nv_mul_f32 {v(RC+1)}, {v(RC+1)}, {v(rs)}")
        for j in range(2):
            x = RC + j; hi = RC + 2 + j; lo = RC + 4 + j
            a(f"v_cvt_pk_bf16_f32 {v(hi)}, {v(x)}, {v(x)}\nv_and_b32 {v(hi)}, 0xffff0000, {v(hi)}\nv_sub_f32 {v(lo)}, {v(x)}, {v(hi)}")
        a(f"v_cvt_pk_bf16_f32 {v(UT)}, {v(RC+2)}, {v(RC+2)}\nv_cvt_pk_bf16_f32 {v(UT+1)}, {v(RC+4)}, {v(RC+3)}\nv_cvt_pk_bf16_f32 {v(UT+2)}, {v(RC+3)}, {v(RC+5)}\nv_mov_b32 {v(UT+3)}, 0")
        k1 = 2 * 0.7978845608028654 * LOG2E
        a(f"s_mov_b32 {s(sT5)}, {f2u(-k1*0.044715):#x}\ns_mov_b32 {s(sG2)}, {f2u(-k1):#x}")
        def epilogue(j, acc):
            o = []
            for g in range(4): o.append(("lds", f"ds_read_b128 {v(RC+4*g,4)}, {v(vX)} offset:{g*1024}", f"R{j}_{g}"))
            for g in (0, 2, 1, 3):
                o.append(("use", f"v_add_f32 {v(acc+4*g)}, {v(acc+4*g)}, {v(RC+4*g)}", [f"R{j}_{g}"]))
                for i in range(1, 4): o.append(("op", f"v_add_f32 {v(acc+4*g+i)}, {v(acc+4*g+i)}, {v(RC+4*g+i)}"))
            for i in range(0, 8, 2):
                P = [(acc + i + d, acc + 8 + i + d, E + 2 * d, E + 2 * d + 1) for d in range(2)]
                for G_, U_, e0, e1 in P: o.append(("op", f"v_mul_f32 {v(G_)}, {v(G_)}, {v(rs)}"))
                for G_, U_, e0, e1 in P: o.append(("op", f"v_mul_f32 {v(e0)}, {v(G_)}, {v(G_)}"))
                for G_, U_, e0, e1 in P: o.append(("op", f"v_mov_b32 {v(e1)}, {s(sG2)}"))
                for G_, U_, e0, e1 in P: o.append(("op", f"v_fmac_f32 {v(e1)}, {s(sT5)}, {v(e0)}"))
                for G_, U_, e0, e1 in P: o.append(("op", f"v_mul_f32 {v(e1)}, {v(e1)}, {v(G_)}"))
                for G_, U_, e0, e1 in P: o.append(("op", f"v_exp_f32 {v(e1)}, {v(e1)}"))
                for G_, U_, e0, e1 in P: o.append(("op", f"v_mul_f32 {v(U_)}, {v(U_)}, {v(rs)}"))
                for G_, U_, e0, e1 in P: o.append(("op", f"v_add_f32 {v(e1)}, 1.0, {v(e1)}"))
                for G_, U_, e0, e1 in P: o.append(("op", f"v_rcp_f32 {v(e1)}, {v(e1)}"))
                for G_, U_, e0, e1 in P: o.append(("op", f"v_mul_f32 {v(G_)}, {v(G_)}, {v(U_)}"))
                for G_, U_, e0, e1 in P: o.append(("op", f"v_mul_f32 {v(G_)}, {v(G_)}, {v(e1)}"))
                o.append(("op", f"v_cvt_pk_bf16_f32 {v(HO+i//2)}, {v(acc+i)}, {v(acc+i+1)}"))
            o.append(("op", f"s_add_u32 {s(sT4)}, {s(sA)}, {j*16384}\nbuffer_store_dwordx4 {v(HO,4)}, {v(vD)}, {s(SRD,4)}, {s(sT4)} offen sc1"))
            return o
        def emit(sc, e):
            if e[0] == "op": sc.op(e[1])
            elif e[0] == "lds": sc.lds(e[1], e[2])
            else: sc.use(e[1], e[2])
        def publish(n):
            L = a.newlabel("Lf4")
            return (f"s_cmp_lg_u32 {s(sWave)}, 0\ns_cbranch_scc1 {L}\ns_add_u32 {s(sT1)}, {s(sN)}, {n}\ns_lshl_b32 {s(sT0)}, {s(sId)}, 7\ns_add_u32 {s(sT0)}, {s(sT0)}, {F4:#x}\n"
                    f"v_mov_b32 {v(t)}, {s(sT1)}\nv_mov_b32 {v(t+1)}, 0\ns_mov_b64 exec, 1\nbuffer_store_dword {v(t)}, {v(t+1)}, {s(SRD,4)}, {s(sT0)} offen sc1\ns_mov_b64 exec, -1\n{L}:")
        a(f"s_cmp_ge_u32 {s(sWave)}, 4\ns_cbranch_scc1 Lp4b")
        for kh in range(2):
            if kh: a.label("Lp4b")
            for j in range(7):
                recv = (j & 1) == kh
                acc = AC + 16 * (j & 1)
                pend = epilogue(j - 1, AC + 16 * ((j - 1) & 1)) if j and ((j - 1) & 1) == kh else []
                if j == 6:
                    a(f"s_cmp_ge_u32 {s(sM)}, 12\ns_cbranch_scc1 Lp4x{kh}")
                if j:
                    a("s_waitcnt vmcnt(0) lgkmcnt(0)\ns_barrier")
                    if j + 2 < 7:
                        self.p4_tile_dma(j + 2)
                    if j >= 2: a(publish(j - 1))
                    a(f"v_add_u32 {v(vW)}, {(40960 if j % 3 else -81920) & 0xffffffff:#x}, {v(vW)}")
                if recv: a(f"s_add_u32 {s(sT4)}, {s(sD)}, {j*16384}\nbuffer_load_dwordx4 {v(UW,4)}, {v(vD)}, {s(SRD,4)}, {s(sT4)} offen sc1")
                sc = Sched()
                def ldW(u): sc.lds(f"ds_read_b128 {v(WF+4*(u%3),4)}, {v(vW)} offset:{u*1024}", f"W{u}")
                ldW(0); ldW(1)
                per = (len(pend) + 15) // 16
                for u in range(20):
                    if u + 2 < 20: ldW(u + 2)
                    if j == 0 and u % 4 == 0: sc.op(f"s_waitcnt vmcnt({16 - u + (1 if recv else 0)})")
                    sc.use(f"v_mfma_f32_32x32x16_bf16 {v(acc,16)}, {v(WF+4*(u%3),4)}, {v(XR+4*u,4)}, {'0' if u == 0 else v(acc,16)}", [f"W{u}"])
                    for e in pend[u*per:(u+1)*per]: emit(sc, e)
                if recv:
                    sc.op(f"s_waitcnt vmcnt(0)\nv_mfma_f32_32x32x16_bf16 {v(acc,16)}, {v(UW,4)}, {v(UT,4)}, {v(acc,16)}")
                else:
                    sc.op("s_nop 11")
                    for g in range(4): sc.op(f"ds_write_b128 {v(vX)}, {v(acc+4*g,4)} offset:{g*1024}")
                sc.render(a, loop=False)
            a("s_waitcnt vmcnt(0) lgkmcnt(0)\ns_barrier")
            a(publish(6))
            if kh == 0:
                sc = Sched(); sc.op("s_nop 3")
                for e in epilogue(6, AC): emit(sc, e)
                sc.render(a, loop=False)
            a("s_branch Lp4e")
            a.label(f"Lp4x{kh}")
            a("s_waitcnt vmcnt(0) lgkmcnt(0)\ns_barrier")
            if kh == 1:
                sc = Sched(); sc.op("s_nop 3")
                for e in epilogue(5, AC + 16): emit(sc, e)
                sc.render(a, loop=False)
            if kh == 0: a("s_branch Lp4e")
        a.label("Lp4e")
        a("s_waitcnt vmcnt(0)\ns_barrier")
        a(publish(7))
        self.stamp("p4")
        R.free("XR", "AC", "WF", "RC", "UT", "UW", "E", "HO")

    def p5(self):
        a, R = self.a, self.R
        t, lane, vD, X1 = R["t"], R["lane"], R["vD"], R["X1"]
        ACC = R.alloc("ACC", 48, at=16); TOK = R.alloc("TOK", 32, at=64); vT = R.alloc("vT", 4, at=116)
        vT2 = R.alloc("vT2", 4, at=120); vA = R.alloc("vA", at=125)
        free0 = [96, 100, 104, 108, 112] + list(range(136, 176, 4))
        a(f"s_lshl_b32 {s(sT0)}, {s(sTb)}, 2\ns_lshr_b32 {s(sT1)}, {s(sM)}, 3\ns_lshl_b32 {s(sT1)}, {s(sT1)}, 1\ns_add_u32 {s(sT0)}, {s(sT0)}, {s(sT1)}\ns_lshr_b32 {s(sT1)}, {s(sWave)}, 2\ns_add_u32 {s(sT0)}, {s(sT0)}, {s(sT1)}")
        a(f"s_mul_i32 {s(sA)}, {s(sT0)}, 108\ns_and_b32 {s(sT1)}, {s(sWave)}, 3\ns_lshl_b32 {s(sT1)}, {s(sT1)}, 2\ns_add_u32 {s(sA)}, {s(sA)}, {s(sT1)}\ns_lshl_b32 {s(sA)}, {s(sA)}, 10\ns_add_u32 {s(sA)}, {s(sA)}, {HF:#x}")
        a(f"s_lshl_b32 {s(sD)}, {s(sWave)}, 12\ns_add_u32 {s(sD)}, {s(sD)}, {L_BIG}")
        def hdma(sg):
            o = f"s_add_u32 {s(sT0)}, {s(sA)}, {sg*16384}\ns_add_u32 m0, {s(sD)}, {(sg&3)*32768}\ns_nop 0\n"
            for i in range(4): o += f"buffer_load_dwordx4 {v(vD)}, {s(SRD,4)}, {s(sT0)} offen offset:{i*1024} sc1 lds\n"
            return o
        def poll(n, lab):
            a(f"s_cmp_lg_u32 {s(sWave)}, 0\ns_cbranch_scc1 Lq6{lab}")
            self.poll16(F4, "row", "4" + lab, minval=n)
            a.label(f"Lq6{lab}")
        poll(4, "a")
        a("s_barrier")
        self.tok_addr(vT, L_BIG, 16384, 4)
        for i in range(4): a(f"v_add_u32 {v(vT2+i)}, 65536, {v(vT+i)}")
        a(f"s_cmp_ge_u32 {s(sWave)}, 4\ns_cbranch_scc1 Lp5b")
        for fp in range(2):
            if fp: a.label("Lp5b")
            nf = 3 - fp
            wd = self.pin_list(fp)[1]
            reg = {n: PIN + 40 + 4 * n for n in range(20)}
            free = list(free0)
            vm = []
            nxt = [20]
            def wload(cnt):
                for _ in range(cnt):
                    if nxt[0] >= len(wd) or not free: return
                    n = nxt[0]; nxt[0] += 1
                    reg[n] = free.pop(0)
                    _, f, j = wd[n]
                    a(f"s_add_u32 {s(sT4)}, {s(sB)}, {self.wd_off(fp, f, j):#x}\nbuffer_load_dwordx4 {v(reg[n],4)}, {v(vD)}, {s(SRD,4)}, {s(sT4)} offen sc1")
                    vm.append(("w", n))
            def vwait(tag):
                if tag not in vm: return
                i = len(vm) - 1 - vm[::-1].index(tag)
                a(f"s_waitcnt vmcnt({len(vm)-1-i})")
                del vm[:i + 1]
            for sg in range(4):
                a(hdma(sg)); vm += [("h", sg)] * 4
            wload(len(free))
            for sg in range(7):
                if sg in (1, 3):
                    poll(6 if sg == 1 else 7, f"{fp}{sg}")
                vwait(("h", sg))
                a("s_waitcnt lgkmcnt(0)\ns_barrier")
                if 1 <= sg <= 3:
                    a(hdma(sg + 3)); vm += [("h", sg + 3)] * 4
                if sg == 6: a(f"s_and_b32 {s(sT0)}, {s(sWave)}, 3\ns_cmp_eq_u32 {s(sT0)}, 3\ns_cbranch_scc1 Lp5s{fp}")
                for e in range(2):
                    for f in range(nf): vwait(("w", (2 * sg + e) * nf + f))
                sc = Sched()
                for e in range(2):
                    for i in range(4):
                        off = (sg & 3) * 32768 + e * 2048
                        va = vT + i
                        if off >= 65536: va, off = vT2 + i, off - 65536
                        sc.lds(f"ds_read_b128 {v(TOK+16*e+4*i,4)}, {v(va)} offset:{off}", f"T{e}_{i}")
                for e in range(2):
                    for i in range(4):
                        for f in range(nf):
                            d = ACC + (f * 4 + i) * 4
                            n = (2 * sg + e) * nf + f
                            sc.use(f"v_mfma_f32_16x16x32_bf16 {v(d,4)}, {v(reg[n],4)}, {v(TOK+16*e+4*i,4)}, {'0' if sg == 0 and e == 0 else v(d,4)}", [f"T{e}_{i}"])
                sc.render(a, loop=False)
                for n in range(2 * sg * nf, 2 * (sg + 1) * nf): free.append(reg[n])
                wload(2 * nf)
            a.label(f"Lp5s{fp}")
            a("s_waitcnt vmcnt(0)\ns_barrier")
            if fp == 0: self.stamp("p5m")
            self.reduce4(fp, ACC, TOK, vT)
            GB = TOK; XO = 96
            a(f"v_lshrrev_b32 {v(t)}, 4, {v(lane)}\nv_lshlrev_b32 {v(t+1)}, 4, {v(t)}")
            for f in range(nf): a(f"ds_read_b128 {v(GB+4*f,4)}, {v(t+1)} offset:{L_TA + 320 + (3*fp+f)*64}")
            self.row_col(vA, None)
            a("s_waitcnt lgkmcnt(0)")
            for f in range(nf):
                d = ACC + 16 * f
                for j in range(2):
                    x = X1 + 2 * f + j
                    a(f"v_lshlrev_b32 {v(t)}, 16, {v(x)}\nv_and_b32 {v(t+1)}, 0xffff0000, {v(x)}")
                    a(f"v_fmac_f32 {v(t)}, {v(GB+4*f+2*j)}, {v(d+2*j)}\nv_fmac_f32 {v(t+1)}, {v(GB+4*f+2*j+1)}, {v(d+2*j+1)}\nv_cvt_pk_bf16_f32 {v(XO+2*f+j)}, {v(t)}, {v(t+1)}")
                a(f"global_store_dwordx2 {v(vA)}, {v(XO+2*f,2)}, {s(P_OUT,2)} offset:{32*f}")
            if fp == 0: a("s_branch Lp5e")
        a.label("Lp5e")
        self.stamp("end")
        R.free("ACC", "TOK", "vT", "vT2", "vA")

    def finish(self):
        a, R = self.a, self.R
        t = R["t"]; lane = R["lane"]
        if self.stamps:
            a("s_waitcnt lgkmcnt(0)")
            a(f"s_cmp_lg_u32 {s(sWave)}, 0\ns_cbranch_scc1 Lst")
            a(f"s_lshl_b32 {s(sT0)}, s2, 7\ns_add_u32 {s(sT0)}, {s(sT0)}, {DBG + 0x800000:#x}\nv_mov_b32 {v(t+1)}, 0")
            for i in range(self.nst):
                a(f"v_mov_b32 {v(t)}, {s(sStamp+2*i)}\nbuffer_store_dword {v(t)}, {v(t+1)}, {s(SRD,4)}, {s(sT0)} offen offset:{4*i}")
            if self.stamps == "dbg":
                a(f"s_cmp_lg_u32 s2, 37\ns_cbranch_scc1 Lst")
                for i in range(self.nst):
                    a(f"s_sub_u32 {s(sT0)}, {s(sStamp+2*i)}, {s(sStamp)}\nv_mov_b32 {v(t)}, {s(sT0)}\nglobal_store_dword {v(t+1)}, {v(t)}, {s(P_DBG,2)} offset:{4*i}")
            a.label("Lst")
        a(f"s_cmp_lg_u32 s2, 0\ns_cbranch_scc1 Lend\ns_cmp_lg_u32 {s(sWave)}, 0\ns_cbranch_scc1 Lend")
        a(f"s_mov_b32 {s(sT1)}, 0")
        self.flag_store(WS_E, sT1, 0, t)
        a.label("Lend")

    def build(self):
        self.p01()
        a, R = self.a, self.R
        if self.stop == 1:
            t = R["t"]
            a(f"v_lshlrev_b32 {v(t)}, 4, v0\nv_add_u32 {v(t+1)}, {L_X}, {v(t)}\nds_read_b128 v[100:103], {v(t+1)}\nds_read_b128 v[104:107], {v(t+1)} offset:8192")
            a(f"s_lshl_b32 {s(sT0)}, {s(sId)}, 14\ns_add_u32 {s(sT0)}, {s(sT0)}, {DBG:#x}\ns_waitcnt lgkmcnt(0)")
            a(f"buffer_store_dwordx4 v[100:103], {v(t)}, {s(SRD,4)}, {s(sT0)} offen\ns_add_u32 {s(sT0)}, {s(sT0)}, 8192\nbuffer_store_dwordx4 v[104:107], {v(t)}, {s(SRD,4)}, {s(sT0)} offen")
        regs = None
        if self.stop >= 2:
            regs = dict(Qr=(10, 2), Qm=(12, 8), SA=(20, 32), SB=(52, 32), O=(84, 32), Km=(116, 4), V=(120, 8), KR=(128, 4),
                        vK=(4, 1), vR=(5, 1), vV=(6, 1), vDma=(7, 1), vM=(8, 1), vT0=(134, 1))
            self.p2()
        if self.stop >= 3: self.p3()
        if self.stop >= 4: self.p4()
        if self.stop >= 5: self.p5()
        self.finish()
        if regs:
            a("s_endpgm")
            self.slow_path(regs)
        a.label("Lcode_end")
        hdr = open("adaLN_cond__mha_block__geglu_ffn__prompt.s.ref").read().split("; Override")[0]
        hdr += f"; generated by gen/gen.py (hand-written generator): one persistent launch, 256 workgroups x 8 waves\n; @launch grid=(256,1,1) block=(512,1,1) lds={LDS_BYTES}\n"
        body = self.a.text()
        return kernel_wrap(NAME, body, vgpr=256, header=hdr)

if __name__ == "__main__":
    import hazard
    stop = int(sys.argv[1]) if len(sys.argv) > 1 else 99
    g = G(stop=stop, stamps=sys.argv[2] if len(sys.argv) > 2 else False)
    txt = g.build()
    hazard.check(txt)
    open("out.s", "w").write(txt)
    print("vgpr high", g.R.high, "lines", txt.count("\n"), getattr(g, "stnames", ""))
```

```python
from dsl import *
SLOT = 24576
HOFF = 11264
ROWB = 56
CFG = dict(nolds=False, nobar=False, nomfma=False, nodma=False, lagprio=True, dmamode="spread", stamp=False,
           pos=dict(pv3=2, m2b=7, pv0=16, s0=24, pv1=28, s1=33, pv2=40, km=35, v1=4, v0=42, bar=37, kr=44), dmapos=(10, 20, 30), xpos=(9, 18, 26, 31), lpos=(37, 45))
NSLOT = 3

class Sched:
    def __init__(self): self.items = []
    def op(self, t): self.items.append(("op", t, None))
    def lds(self, t, tag): self.items.append(("lds", t, tag))
    def use(self, t, tags): self.items.append(("use", t, tags))
    def render(self, a, loop=True, pre=()):
        items = self.items
        order = [it[2] for it in items if it[0] == "lds"] if loop else list(pre)
        pos = {}
        for i, t in enumerate(order): pos[t] = i
        n = len(order)
        done = -1
        for kind, t, x in items:
            if kind == "lds":
                pos[x] = n; n += 1
                a(t)
            elif kind == "use":
                need = max(pos[g] for g in x)
                if need > done:
                    cnt = n - 1 - need
                    assert cnt <= 15, cnt
                    a(f"s_waitcnt lgkmcnt({cnt})")
                    done = need
                a(t)
            else:
                a(t)

def attn_iter(sc, R, X, Y, it, mode, sdelta, barrier_code, dmas):
    O, Qm, Qr, Km, KR, V = R["O"], R["Qm"], R["Qr"], R["Km"], R["KR"], R["V"]
    vK, vR, vV, vm = R["vK"], R["vR"], R["vV"], R["vM"]
    P = CFG["pos"]
    main = []
    for g in range(4):
        b = X + 8 * g
        m = vm + (g >> 1)
        if mode == "max":
            for j in range(4):
                main.append(f"v_max3_f32 {v(m)}, {v(b+2*j)}, {v(b+2*j+1)}, {v(m)}")
            for j in range(8): main.append("s_nop 0")
        else:
            for j in range(8):
                if mode == "sub":
                    main.append(f"v_sub_f32 {v(b+j)}, {v(b+j)}, {v(m)}\nv_exp_f32 {v(b+j)}, {v(b+j)}")
                else:
                    main.append(f"v_exp_f32 {v(b+j)}, {v(b+j)}")
            for j in range(4):
                main.append(f"v_cvt_pk_bf16_f32 {v(b+j)}, {v(b+2*j)}, {v(b+2*j+1)}")
    def pv(g, buf):
        o = O + 16 * (g >> 1)
        return f"v_mfma_f32_32x32x16_bf16 {v(o,16)}, {v(V+4*(g&1),4)}, {v(buf+8*g,4)}, {v(o,16)}"
    def vld(m, tile):
        off = (tile * 32 + m * 16) * ROWB
        return [(f"ds_read_b64_tr_b16 {v(V+4*m,2)}, {v(vV)} offset:{off}", f"V{m}a"),
                (f"ds_read_b64_tr_b16 {v(V+4*m+2,2)}, {v(vV)} offset:{off+8*ROWB}", f"V{m}b")]
    nxt = 1 - it
    ev = {}
    def at(p, *acts): ev.setdefault(p, []).extend(acts)
    dopv = mode != "max"
    if CFG["lagprio"]:
        if it == 0: at(10, ("op", "s_setprio 0"))
        if it == 1: at(0, ("op", "s_setprio 2")); at(30, ("op", "s_setprio 1"))
    if dopv: at(P["pv3"], ("use", pv(3, Y), ["V1a", "V1b"]))
    at(P["m2b"], ("use", f"v_mfma_f32_32x32x4_2b_bf16 {v(Y,32)}, {v(KR+2*nxt,2)}, {v(Qr,2)}, 0", ["KR"]))
    if dopv:
        at(P["v1"], *[("lds", t, g) for t, g in vld(1, it)])
        at(P["pv0"], ("use", pv(0, X), ["V0a", "V0b"]))
    at(P["s0"], ("use", f"v_mfma_f32_32x32x16_bf16 {v(Y,16)}, {v(Km,4)}, {v(Qm,4)}, {v(Y,16)}", ["Km"]))
    if dopv: at(P["pv1"], ("use", pv(1, X), ["V1a", "V1b"]))
    at(P["s1"], ("use", f"v_mfma_f32_32x32x16_bf16 {v(Y+16,16)}, {v(Km,4)}, {v(Qm+4,4)}, {v(Y+16,16)}", ["Km"]))
    if dopv: at(P["pv2"], ("use", pv(2, X), ["V0a", "V0b"]))
    if it == 0:
        assert P["bar"] >= 1
        at(P["bar"], ("op", barrier_code + ("s_setprio 3\n" if CFG["lagprio"] else "")))
        at(P["bar"], ("op", f"v_add_u32 {v(vK)}, {sdelta}, {v(vK)}"))
        at(max(P["km"], P["bar"] + 1), ("lds", f"ds_read_b128 {v(Km,4)}, {v(vK)}", "Km"))
        at(max(P["kr"], P["bar"] + 1) - 1, ("op", f"v_add_u32 {v(vR)}, {sdelta}, {v(vR)}"))
        at(max(P["kr"], P["bar"] + 1), ("lds", f"ds_read2_b64 {v(KR,4)}, {v(vR)} offset0:0 offset1:{32*ROWB//8}", "KR"))
    else:
        at(P["km"], ("lds", f"ds_read_b128 {v(Km,4)}, {v(vK)} offset:1024", "Km"))
        at(P["v0"] - 1, ("op", f"v_add_u32 {v(vV)}, {sdelta}, {v(vV)}"))
    if dopv: at(P["v0"], *[("lds", t, g) for t, g in vld(0, nxt)])
    for p, d in dmas: at(p, ("op", d))
    for i, m in enumerate(main):
        sc.op(m)
        for act in ev.get(i, []):
            if act[0] == "op":
                sc.op(act[1])
            elif act[0] == "lds":
                if CFG["nolds"]: continue
                sc.lds(act[1], act[2])
            else:
                t = act[1]
                if CFG["nomfma"]: t = "s_nop 0"
                if CFG["nolds"]: sc.op(t)
                else: sc.use(t, act[2])

def attn_setup(a, R, S, ring0):
    lane = R["lane"]; vK, vR, vV, vD, t0, t1 = R["vK"], R["vR"], R["vV"], R["vDma"], R["vT0"], R["Km"]
    a(f"v_lshlrev_b32 {v(vD)}, 4, {v(lane)}")
    a(f"s_lshl_b32 {s(S['sT'])}, {s(S['sKH'])}, 11\ns_add_u32 {s(S['sT'])}, {s(S['sT'])}, {s(S['sHH'])}")
    a(f"v_add_u32 {v(vK)}, {s(S['sT'])}, {v(vD)}")
    a(f"s_mul_i32 {s(S['sT'])}, {s(S['sKH'])}, {64*ROWB}\ns_add_u32 {s(S['sT'])}, {s(S['sT'])}, {s(S['sHH'])}\ns_add_u32 {s(S['sT'])}, {s(S['sT'])}, 4096")
    a(f"v_and_b32 {v(t0)}, 31, {v(lane)}\nv_mul_u32_u24 {v(vR)}, {ROWB}, {v(t0)}\nv_add_u32 {v(vR)}, 48, {v(vR)}")
    a(f"v_add_u32 {v(vR)}, {s(S['sT'])}, {v(vR)}")
    a(f"v_lshrrev_b32 {v(t0)}, 5, {v(lane)}\nv_lshlrev_b32 {v(t0)}, 2, {v(t0)}\nv_bfe_u32 {v(vV)}, {v(lane)}, 2, 2\nv_add_u32 {v(t0)}, {v(t0)}, {v(vV)}")
    a(f"v_mul_u32_u24 {v(vV)}, {ROWB}, {v(t0)}\nv_add_u32 {v(vV)}, {s(S['sT'])}, {v(vV)}")
    a(f"v_bfe_u32 {v(t0)}, {v(lane)}, 4, 1\nv_lshlrev_b32 {v(t0)}, 2, {v(t0)}\nv_and_b32 {v(t1)}, 3, {v(lane)}\nv_add_u32 {v(t0)}, {v(t0)}, {v(t1)}")
    a(f"v_min_u32 {v(t0)}, 5, {v(t0)}\nv_lshlrev_b32 {v(t0)}, 3, {v(t0)}\nv_add_u32 {v(vV)}, {v(vV)}, {v(t0)}")
    a(f"s_mul_i32 {s(S['sM0Beg'])}, {s(S['sWave'])}, 3072")
    a(f"s_add_u32 {s(S['sKVw'])}, {s(S['sKV'])}, {s(S['sM0Beg'])}")
    a(f"s_add_u32 {s(S['sM0Beg'])}, {s(S['sM0Beg'])}, {ring0}")
    a(f"s_add_u32 {s(S['sM0End'])}, {s(S['sM0Beg'])}, {NSLOT*SLOT}")
    a(f"s_mov_b32 {s(S['sM0'])}, {s(S['sM0Beg'])}\ns_mov_b32 {s(S['sG'])}, {s(S['sTb'])}")
    SB, O, V = R["SB"], R["O"], R["V"]
    for i in range(32): a(f"v_mov_b32 {v(O+i)}, 0")
    for i in range(4): a(f"v_mov_b32 {v(SB+24+i)}, 0\nv_mov_b32 {v(V+4+i)}, 0")
    a(f"s_mov_b32 {s(S['sC'])}, 0\ns_mov_b32 {s(S['sSlot'])}, 0")

def dma_setup(S):
    return (f"s_mul_i32 {s(S['sT'])}, {s(S['sG'])}, {SLOT}\ns_add_u32 {s(S['sT'])}, {s(S['sT'])}, {s(S['sKVw'])}\ns_mov_b32 m0, {s(S['sM0'])}\n"
            f"s_add_u32 {s(S['sG'])}, {s(S['sG'])}, 1\ns_and_b32 {s(S['sG'])}, {s(S['sG'])}, 15\n"
            f"s_add_u32 {s(S['sM0'])}, {s(S['sM0'])}, {SLOT}\ns_cmp_ge_u32 {s(S['sM0'])}, {s(S['sM0End'])}\ns_cselect_b32 {s(S['sM0'])}, {s(S['sM0Beg'])}, {s(S['sM0'])}\n")
def dma1(R, S, srd, i): return f"buffer_load_dwordx4 {v(R['vDma'])}, {s(srd,4)}, {s(S['sT'])} offen offset:{i*1024} sc1 lds\n"
def dma_chunk(R, S, srd): return dma_setup(S) + "".join(dma1(R, S, srd, i) for i in range(3))
def dma_skip(S):
    return (f"s_add_u32 {s(S['sG'])}, {s(S['sG'])}, 1\ns_and_b32 {s(S['sG'])}, {s(S['sG'])}, 15\ns_add_u32 {s(S['sM0'])}, {s(S['sM0'])}, {SLOT}\n")

def attn_head(a, R):
    SA, V, Km, KR, Qm, Qr, vK, vR, vV = (R[n] for n in ("SA", "V", "Km", "KR", "Qm", "Qr", "vK", "vR", "vV"))
    a(f"ds_read2_b64 {v(KR,4)}, {v(vR)} offset0:0 offset1:{32*ROWB//8}\nds_read_b128 {v(Km,4)}, {v(vK)}")
    a(f"ds_read_b64_tr_b16 {v(V,2)}, {v(vV)}\nds_read_b64_tr_b16 {v(V+2,2)}, {v(vV)} offset:{8*ROWB}")
    a("s_waitcnt lgkmcnt(3)")
    a(f"v_mfma_f32_32x32x4_2b_bf16 {v(SA,32)}, {v(KR,2)}, {v(Qr,2)}, 0")
    a("s_nop 15\ns_nop 1\ns_waitcnt lgkmcnt(0)")
    a(f"v_mfma_f32_32x32x16_bf16 {v(SA,16)}, {v(Km,4)}, {v(Qm,4)}, {v(SA,16)}")
    a(f"v_mfma_f32_32x32x16_bf16 {v(SA+16,16)}, {v(Km,4)}, {v(Qm+4,4)}, {v(SA+16,16)}")
    a(f"ds_read_b128 {v(Km,4)}, {v(vK)} offset:1024")
    a("s_nop 10\ns_waitcnt lgkmcnt(0)")

def attn_trip(a, R, S, srd, mode, extras=(), dodma=True, younger=0, late=()):
    a(f"s_add_u32 {s(S['sSlot'])}, {s(S['sSlot'])}, 1\ns_cmp_eq_u32 {s(S['sSlot'])}, {NSLOT}")
    a(f"s_movk_i32 {s(S['sDelta'])}, {SLOT}\ns_cselect_b32 {s(S['sDelta'])}, {(-(NSLOT-1)*SLOT) & 0xffffffff}, {s(S['sDelta'])}\ns_cselect_b32 {s(S['sSlot'])}, 0, {s(S['sSlot'])}")
    sc = Sched()
    bar = f"s_waitcnt vmcnt({len(extras) + younger})\ns_barrier\n"
    dp = CFG["dmapos"]
    d1 = [(dp[0], dma_setup(S) + dma1(R, S, srd, 0)), (dp[1], dma1(R, S, srd, 1)), (dp[2], dma1(R, S, srd, 2))] if dodma else []
    d1 += [(CFG["lpos"][i], e) for i, e in enumerate(late)]
    xp = CFG["xpos"]
    d0 = [(xp[i], e) for i, e in enumerate(extras)]
    attn_iter(sc, R, R["SA"], R["SB"], 0, mode, s(S['sDelta']), bar, d0)
    attn_iter(sc, R, R["SB"], R["SA"], 1, mode, s(S['sDelta']), bar, d1)
    sc.render(a)

def attn_loop(a, R, S, srd, mode, upto):
    L = a.newlabel("Lat")
    a(".p2align 3")
    a.label(L)
    attn_trip(a, R, S, srd, mode)
    a(f"s_add_u32 {s(S['sC'])}, {s(S['sC'])}, 1\ns_cmp_lt_u32 {s(S['sC'])}, {upto}\ns_cbranch_scc1 {L}")

def attn_tail(a, R, mode):
    a("s_nop 0\ns_waitcnt lgkmcnt(0)")
    if mode != "max":
        a(f"v_mfma_f32_32x32x16_bf16 {v(R['O']+16,16)}, {v(R['V']+4,4)}, {v(R['SB']+24,4)}, {v(R['O']+16,16)}")
    a("s_setprio 0")
```

```python
import sys, os
sys.path.insert(0, "gen")
from dsl import *
import attn
from attn import SLOT, HOFF, ROWB, Sched
NAME = "adaLN_cond__mha_block__geglu_ffn__prompt_kernel"
WS_E = 0
F0, F1, F2, F3, F4, FU, FR = 0x10000, 0x18000, 0x20000, 0x28000, 0x30000, 0x38000, 0x40000
XH = 0x2100000
MP1, MP2, ST = 0x50000, 0x60000, 0x80000
WQF, KV, OF, XG, HF = 0x100000, 0x400000, 0xA00000, 0xD00000, 0x1000000
WOF, WDF, WGF, UVF = 0x1700000, 0x1800000, 0x1B00000, 0x2000000
JUNK = 0x2400000
DBG = 0x2600000
WS_SIZE = 0x10000000
K = 1024
L_GB, L_SB, L_TA, L_ZERO, L_BAD = 0, 1280, 2560, 3520, 3584
L_X = 4 * K
L_BIG = 20 * K
L_SCR = 116 * K
L_G, L_S, L_RED = 152 * K, 152 * K + 2560, 152 * K + 5120
L_OX = 92 * K
L_PL = 100 * K
LDS_BYTES = 160 * K
P_X, P_WQKV, P_WO, P_BX, P_WG, P_WU, P_WD, P_C, P_WMOD, P_OUT, P_DBG, P_WS = [4 + 2 * i for i in range(12)]
SRD = 28
sWave, sTb, sM, sN, sId = 32, 33, 34, 35, 36
sT0, sT1, sT2, sT3, sT4, sT5 = 37, 38, 39, 40, 41, 42
sEx = 44
sPoll = 46
S_AT = dict(sKV=48, sTb=sTb, sWave=sWave, sHH=49, sC=50, sDelta=51, sSlot=52, sM0=53, sG=54, sT=55, sM0Beg=56, sM0End=57, sKH=58, sKVw=59)
sA, sB, sC_, sD = 60, 61, 62, 63
sJd, sJs, sJt, sG2, sPa = 64, 65, 66, 67, 68
sStamp = 70
PIN = 136
UA = 232
sPb, sUL = 60, 62
DUM = 134
sMB, sTbB = 43, 47
OPT = dict(rb=True, blocal=False, pf=False, touch=False, wgtouch=0)
for kv in os.environ.get('OPT', '').split(','):
    if kv: OPT[kv.split('=')[0]] = int(kv.split('=')[1])
POLL_MAX = 30000
TIMER = 's_memtime' if os.environ.get('CYC') else 's_memrealtime'
import os
STAMPS = os.environ.get('STAMPS', 'start,f0,f0seen,p1go,p1loop,f1,f1seen,attn,f2,f2seen,oin,f3,f3seen,p4,p5m,end').split(',')
LOG2E = 1.4426950408889634
import struct
def f2u(x): return struct.unpack("<I", struct.pack("<f", x))[0]

class VM:
    def __init__(self): self.q = []
    def add(self, tag, n=1): self.q += [tag] * n
    def wait(self, *tags):
        idx = [len(self.q) - 1 - self.q[::-1].index(t_) for t_ in tags if t_ in self.q]
        if not idx: return ""
        i = max(idx); n = len(self.q) - 1 - i
        assert n < 64
        del self.q[:i + 1]
        return f"s_waitcnt vmcnt({n})"

class G:
    def __init__(self, stop=99, stamps=False):
        self.a = Asm(); self.R = RegAlloc(1, 256); self.stop = stop; self.stamps = stamps; self.nst = 0
    def stamp(self, name):
        if self.stamps and name in STAMPS:
            assert self.nst < 16
            self.a(f"{TIMER} {s(sStamp + 2*self.nst, 2)}")
            self.stnames = getattr(self, "stnames", []) + [name]
            self.nst += 1

    def stampw(self, name):
        n = self.nst; self.stamp(name)
        if self.nst > n: self.a("s_waitcnt lgkmcnt(0)")
    def stamp_txt(self, name, wait=False):
        if not (self.stamps and name in STAMPS): return ""
        self.stnames.append(name); self.nst += 1
        return f"{TIMER} {s(sStamp + 2*(self.nst-1), 2)}" + ("\ns_waitcnt lgkmcnt(0)" if wait else "")
    def poll(self, vaddrs, cmp, label):
        a = self.a
        L = a.newlabel("Lp" + label); E = a.newlabel("Lpe" + label)
        a(f"s_mov_b32 {s(sPoll)}, {POLL_MAX}")
        a.label(L)
        for va, vt in vaddrs: a(f"buffer_load_dword {v(vt)}, {v(va)}, {s(SRD,4)}, 0 offen sc1")
        a("s_waitcnt vmcnt(0)")
        cmp()
        a(f"s_cbranch_vccz {E}")
        a(f"s_sub_u32 {s(sPoll)}, {s(sPoll)}, 1\ns_cmp_gt_i32 {s(sPoll)}, 0\ns_cbranch_scc1 {L}")
        a.label(E)
    def flag_store(self, base, sidx, stride, vt, val=None):
        a = self.a
        a(f"s_mul_i32 {s(sT0)}, {s(sidx)}, {stride}\ns_add_u32 {s(sT0)}, {s(sT0)}, {base}")
        a(f"v_mov_b32 {v(vt)}, {s(sN if val is None else val)}\nv_mov_b32 {v(vt+1)}, 0")
        a(f"s_mov_b64 {s(sEx,2)}, exec\ns_mov_b64 exec, 1")
        a(f"buffer_store_dword {v(vt)}, {v(vt+1)}, {s(SRD,4)}, {s(sT0)} offen sc1")
        a(f"s_mov_b64 exec, {s(sEx,2)}")

    def rb(self, va, so, off=0):
        return f"buffer_load_dword {v(DUM)}, {v(va)}, {s(SRD,4)}, {s(so)} offen offset:{off} sc1" if OPT["rb"] else ""
    def gemv_issue(self, sCol, sKs, rW, rC, t, nl):
        a = self.a; lane = self.R["lane"]
        a(f"s_lshl_b32 {s(sT0)}, {s(sKs)}, 7\ns_mul_i32 {s(sT1)}, {s(sWave)}, {8*nl}\ns_add_u32 {s(sT0)}, {s(sT0)}, {s(sT1)}")
        a(f"v_lshrrev_b32 {v(t)}, 3, {v(lane)}\nv_add_u32 {v(t)}, {s(sT0)}, {v(t)}")
        a(f"v_lshlrev_b32 {v(t+1)}, 1, {v(t)}")
        a(f"v_mul_u32_u24 {v(t)}, 7680, {v(t)}\nv_and_b32 {v(t+2)}, 7, {v(lane)}\nv_lshlrev_b32 {v(t+2)}, 4, {v(t+2)}")
        a(f"v_add3_u32 {v(t)}, {v(t)}, {v(t+2)}, {s(sCol)}")
        for i in range(nl):
            a(f"global_load_dwordx4 {v(rW+4*i,4)}, {v(t)}, {s(P_WMOD,2)}")
            if i + 1 < nl: a(f"v_add_u32 {v(t)}, {8*7680}, {v(t)}")
        for i in range(nl): a(f"global_load_ushort {v(rC+i)}, {v(t+1)}, {s(P_C,2)} offset:{16*i}")
    def gemv_math(self, rW, rC, acc, t, nl):
        a = self.a; lane = self.R["lane"]
        for i in range(nl):
            c = rC + i
            a(f"v_lshlrev_b32 {v(c)}, 16, {v(c)}\nv_mul_f32 {v(t)}, {f2u(-LOG2E):#x}, {v(c)}\nv_exp_f32 {v(t)}, {v(t)}\ns_nop 0\nv_add_f32 {v(t)}, 1.0, {v(t)}")
            a(f"v_rcp_f32 {v(t)}, {v(t)}\ns_nop 0\nv_mul_f32 {v(c)}, {v(c)}, {v(t)}\nv_cvt_pk_bf16_f32 {v(c)}, {v(c)}, {v(c)}\nv_and_b32 {v(c)}, 0xffff0000, {v(c)}")
        for i in range(nl):
            for j in range(4):
                w = rW + 4 * i + j
                a(f"v_lshlrev_b32 {v(t)}, 16, {v(w)}\nv_and_b32 {v(t+1)}, 0xffff0000, {v(w)}")
                if i == 0: a(f"v_mul_f32 {v(acc+2*j)}, {v(t)}, {v(rC)}\nv_mul_f32 {v(acc+2*j+1)}, {v(t+1)}, {v(rC)}")
                else: a(f"v_fmac_f32 {v(acc+2*j)}, {v(t)}, {v(rC+i)}\nv_fmac_f32 {v(acc+2*j+1)}, {v(t+1)}, {v(rC+i)}")
        a("s_nop 1")
        for j in range(4): a(f"v_permlane32_swap_b32 {v(acc+j)}, {v(acc+4+j)}")
        for j in range(4): a(f"v_add_f32 {v(acc+j)}, {v(acc+j)}, {v(acc+4+j)}")
        a("s_nop 1")
        for j in range(2): a(f"v_permlane16_swap_b32 {v(acc+j)}, {v(acc+2+j)}")
        for j in range(2): a(f"v_add_f32 {v(acc+j)}, {v(acc+j)}, {v(acc+2+j)}")
        a("s_nop 1")
        for j in range(2): a(f"v_add_f32_dpp {v(acc+j)}, {v(acc+j)}, {v(acc+j)} row_ror:8 row_mask:0xf bank_mask:0xf")
        a(f"v_and_b32 {v(t)}, 7, {v(lane)}\nv_lshlrev_b32 {v(t)}, 5, {v(t)}\nv_lshrrev_b32 {v(t+1)}, 5, {v(lane)}\nv_lshl_add_u32 {v(t)}, {v(t+1)}, 4, {v(t)}")
        a(f"v_bfe_u32 {v(t+1)}, {v(lane)}, 4, 1\nv_lshl_add_u32 {v(t)}, {v(t+1)}, 3, {v(t)}")
        a(f"s_lshl_b32 {s(sT0)}, {s(sWave)}, 8\ns_add_u32 {s(sT0)}, {s(sT0)}, {L_RED}\nv_add_u32 {v(t)}, {s(sT0)}, {v(t)}")
        a(f"ds_write_b64 {v(t)}, {v(acc,2)}")
    def gemv_final(self, sDst, acc, t, nw):
        a = self.a; lane = self.R["lane"]
        a(f"v_lshlrev_b32 {v(t)}, 2, {v(lane)}\nv_add_u32 {v(t+1)}, {L_RED}, {v(t)}")
        for i in range(nw // 2): a(f"ds_read2st64_b32 {v(acc+2*i,2)}, {v(t+1)} offset0:{2*i} offset1:{2*i+1}")
        a("s_waitcnt lgkmcnt(0)")
        for j in ((4, 2, 1) if nw == 8 else (2, 1)):
            for i in range(j): a(f"v_add_f32 {v(acc+i)}, {v(acc+i)}, {v(acc+i+j)}")
        a(f"buffer_store_dword {v(acc)}, {v(t)}, {s(SRD,4)}, {s(sDst)} offen sc1")

    def p01(self):
        a, R = self.a, self.R
        lane = R.alloc("lane", at=1)
        t = R.alloc("t", 8, at=2)
        R.alloc("dummy", at=DUM)
        gW = R.alloc("gW", 8, at=244); gC = R.alloc("gC", 2, at=252)
        X = R.alloc("X", 80, 4)
        ACC = R.alloc("ACC", 64, 4)
        GD = R.alloc("GD", 10, 2)
        WF = R.alloc("WF", 32, 4)
        SF = R.alloc("SF", 16, 4)
        HB = R.alloc("HB", 8, 4)
        vA = R.alloc("vA"); vB = R.alloc("vB"); vst = R.alloc("vst", 4, 2)
        a(f"s_cmp_ge_u32 s2, 256\ns_cbranch_scc1 Lend")
        a(f"s_load_dwordx16 s[4:19], s[0:1], 0\ns_load_dwordx8 s[20:27], s[0:1], 64")
        self.stamp("start")
        a(f"v_lshrrev_b32 {v(t)}, 6, v0\nv_and_b32 {v(lane)}, 63, v0\ns_nop 0\nv_readfirstlane_b32 {s(sWave)}, {v(t)}")
        a(f"v_mov_b32 {v(t)}, 0\nv_mov_b32 {v(t+1)}, 0\nv_lshlrev_b32 {v(t+2)}, 3, {v(lane)}\nds_write_b64 {v(t+2)}, {v(t,2)} offset:{L_ZERO}")
        a(f"s_and_b32 {s(sT0)}, s2, 1\ns_lshl_b32 {s(sT0)}, {s(sT0)}, 3\ns_bfe_u32 {s(sT1)}, s2, 0x30003\ns_add_u32 {s(sM)}, {s(sT0)}, {s(sT1)}")
        a(f"s_bfe_u32 {s(sT0)}, s2, 0x20001\ns_lshl_b32 {s(sT0)}, {s(sT0)}, 2\ns_lshr_b32 {s(sT1)}, s2, 6\ns_add_u32 {s(sTb)}, {s(sT0)}, {s(sT1)}")
        a(f"s_lshl_b32 {s(sId)}, {s(sTb)}, 4\ns_add_u32 {s(sId)}, {s(sId)}, {s(sM)}")
        if OPT["blocal"]:
            a(f"s_and_b32 {s(sT0)}, s2, 7\ns_lshl_b32 {s(sT0)}, {s(sT0)}, 1\ns_lshr_b32 {s(sT1)}, s2, 7\ns_add_u32 {s(sTbB)}, {s(sT0)}, {s(sT1)}\ns_bfe_u32 {s(sMB)}, s2, 0x40003")
        else:
            a(f"s_mov_b32 {s(sTbB)}, {s(sTb)}\ns_mov_b32 {s(sMB)}, {s(sM)}")
        a(f"s_mul_i32 {s(sA)}, s2, 3277\ns_lshr_b32 {s(sA)}, {s(sA)}, 16\ns_mul_i32 {s(sT0)}, {s(sA)}, 20\ns_sub_u32 {s(sB)}, s2, {s(sT0)}\ns_lshl_b32 {s(sB)}, {s(sB)}, 7")
        a(f"s_sub_u32 {s(sC_)}, 7, {s(sWave)}\ns_lshl_b32 {s(sC_)}, {s(sC_)}, 4\ns_add_u32 {s(sC_)}, {s(sC_)}, {s(sTb)}")
        a(f"v_and_b32 {v(vA)}, 7, {v(lane)}\nv_mul_u32_u24 {v(vA)}, 1280, {v(vA)}\nv_lshrrev_b32 {v(t)}, 3, {v(lane)}\nv_lshl_add_u32 {v(vA)}, {v(t)}, 4, {v(vA)}")
        a(f"s_mul_i32 {s(sT0)}, {s(sId)}, {8*1280}\ns_lshl_b32 {s(sT1)}, {s(sWave)}, 7\ns_add_u32 {s(sT0)}, {s(sT0)}, {s(sT1)}\nv_add_u32 {v(vA)}, {s(sT0)}, {v(vA)}")
        for j in range(4): a(f"v_mov_b32 {v(X+4+j)}, 0")
        a("s_waitcnt lgkmcnt(0)")
        self.stamp("karg")
        a(f"s_load_dword {s(sN)}, {s(P_WS,2)}, {WS_E}")
        a(f"s_mov_b32 {s(SRD)}, {s(P_WS)}\ns_mov_b32 {s(SRD+1)}, {s(P_WS+1)}\ns_mov_b32 {s(SRD+2)}, {WS_SIZE:#x}\ns_mov_b32 {s(SRD+3)}, 0x20000")
        a(f"s_cmp_ge_u32 s2, 100\ns_cbranch_scc1 Lg1a")
        self.gemv_issue(sB, sA, gW, gC, t, 2)
        a.label("Lg1a")
        a(f"global_load_dwordx4 {v(X,4)}, {v(vA)}, {s(P_X,2)}")
        a(f"s_cmp_ge_u32 {s(sWave)}, 2\ns_cbranch_scc1 Lx1a\nglobal_load_dwordx4 {v(X+4,4)}, {v(vA)}, {s(P_X,2)} offset:1024")
        a.label("Lx1a")
        a(f"s_cmp_ge_u32 {s(sC_)}, 40\ns_cbranch_scc1 Lw1n")
        a(f"v_and_b32 {v(t)}, 15, {v(lane)}\nv_min_u32 {v(t)}, 14, {v(t)}\nv_mul_u32_u24 {v(t+1)}, 52, {v(t)}\nv_lshrrev_b32 {v(t+1)}, 8, {v(t+1)}")
        a(f"v_mul_u32_u24 {v(t+1)}, 1200, {v(t+1)}\nv_lshl_add_u32 {v(t)}, {v(t)}, 4, {v(t+1)}")
        a(f"v_lshrrev_b32 {v(t+1)}, 4, {v(lane)}\nv_mul_u32_u24 {v(t+1)}, 3840, {v(t+1)}")
        a(f"s_mul_i32 {s(sT0)}, {s(sC_)}, {16*3840}\ns_mul_i32 {s(sT1)}, {s(sM)}, 80\ns_add_u32 {s(sT0)}, {s(sT0)}, {s(sT1)}")
        a(f"v_add3_u32 {v(t)}, {v(t)}, {v(t+1)}, {s(sT0)}")
        a(f"s_lshl_b32 {s(sT0)}, {s(sWave)}, 12\ns_add_u32 m0, {s(sT0)}, {L_SCR}\ns_nop 0")
        for i in range(4):
            a(f"global_load_lds_dwordx4 {v(t)}, {s(P_WQKV,2)}")
            if i < 3: a(f"v_add_u32 {v(t)}, {4*3840}, {v(t)}\ns_add_u32 m0, m0, 1024\ns_nop 0")
        a("s_waitcnt vmcnt(4)\ns_branch Lw1b")
        a.label("Lw1n")
        a(f"s_cmp_lg_u32 {s(sWave)}, 4\ns_cbranch_scc1 Lcw")
        a("s_getpc_b64 s[40:41]")
        a.label("Lpc")
        a(f"s_lshr_b32 {s(sT0)}, s2, 3\ns_lshl_b32 {s(sT0)}, {s(sT0)}, 11\nv_lshl_add_u32 {v(t)}, {v(lane)}, 4, {s(sT0)}")
        a(f"v_min_u32 {v(t)}, Lcode_end-Lpc-2048, {v(t)}")
        a(f"global_load_dwordx4 {v(SF,4)}, {v(t)}, s[40:41]\nglobal_load_dwordx4 {v(SF+4,4)}, {v(t)}, s[40:41] offset:1024\ns_waitcnt vmcnt(2)\ns_branch Lw1b")
        a.label("Lcw")
        a("s_waitcnt vmcnt(0)")
        a.label("Lw1b")
        self.stamp("ld0")
        S1, S2 = vst, vst + 1
        a(f"v_mov_b32 {v(S1)}, 0\nv_mov_b32 {v(S2)}, 0\ns_mov_b32 {s(sT5)}, 0x3f803f80")
        for r in range(8): a(f"v_dot2_f32_bf16 {v(S1)}, {v(X+r)}, {s(sT5)}, {v(S1)}\nv_dot2_f32_bf16 {v(S2)}, {v(X+r)}, {v(X+r)}, {v(S2)}")
        a(f"s_nop 2\nv_mov_b32 {v(vst+2)}, {v(S1)}\nv_mov_b32 {v(vst+3)}, {v(S2)}\ns_nop 1")
        a(f"v_permlane32_swap_b32 {v(S1)}, {v(vst+2)}\nv_permlane32_swap_b32 {v(S2)}, {v(vst+3)}\nv_add_f32 {v(S1)}, {v(S1)}, {v(vst+2)}\nv_add_f32 {v(S2)}, {v(S2)}, {v(vst+3)}")
        a(f"v_mov_b32 {v(vst+2)}, {v(S1)}\nv_mov_b32 {v(vst+3)}, {v(S2)}\ns_nop 1")
        a(f"v_permlane16_swap_b32 {v(S1)}, {v(vst+2)}\nv_permlane16_swap_b32 {v(S2)}, {v(vst+3)}\nv_add_f32 {v(S1)}, {v(S1)}, {v(vst+2)}\nv_add_f32 {v(S2)}, {v(S2)}, {v(vst+3)}\ns_nop 1")
        a(f"v_add_f32_dpp {v(S1)}, {v(S1)}, {v(S1)} row_ror:8 row_mask:0xf bank_mask:0xf\nv_add_f32_dpp {v(S2)}, {v(S2)}, {v(S2)} row_ror:8 row_mask:0xf bank_mask:0xf")
        a(f"v_and_b32 {v(t+4)}, 7, {v(lane)}\nv_lshlrev_b32 {v(t+4)}, 6, {v(t+4)}\ns_lshl_b32 {s(sT0)}, {s(sWave)}, 3\nv_add_u32 {v(t+5)}, {s(sT0)}, {v(t+4)}\nds_write_b64 {v(t+5)}, {v(S1,2)} offset:{L_X}")
        a(f"s_cmp_ge_u32 s2, 100\ns_cbranch_scc1 Lg1b")
        self.gemv_math(gW, gC, ACC, t, 2)
        a.label("Lg1b")
        self.stamp("b1b")
        a(f"s_waitcnt lgkmcnt(0)\ns_mul_i32 {s(sN)}, {s(sN)}, 0x9E3779B1\ns_add_u32 {s(sN)}, {s(sN)}, 0x7F4A7C15\ns_barrier")
        self.stampw("b1a")
        for i in range(4): a(f"ds_read_b128 {v(ACC+16+4*i,4)}, {v(t+4)} offset:{L_X + 16*i}")
        a(f"s_cmp_lg_u32 {s(sWave)}, 3\ns_cbranch_scc1 Lg1e\ns_cmp_ge_u32 s2, 100\ns_cbranch_scc1 Lg1e")
        a(f"s_mul_i32 {s(sT0)}, {s(sA)}, 5120\ns_lshl_b32 {s(sT1)}, {s(sB)}, 1\ns_add_u32 {s(sT0)}, {s(sT0)}, {s(sT1)}\ns_add_u32 {s(sT2)}, {s(sT0)}, {MP1:#x}")
        self.gemv_final(sT2, ACC, t, 8)
        a.label("Lg1e")
        a("s_waitcnt lgkmcnt(0)")
        P_ = ACC + 16
        for j in (8, 4, 2):
            for i in range(j): a(f"v_add_f32 {v(P_+i)}, {v(P_+i)}, {v(P_+i+j)}")
        a(f"v_mul_f32 {v(S1)}, {f2u(1/640):#x}, {v(P_)}\nv_mul_f32 {v(S2)}, {f2u(1/640):#x}, {v(P_+1)}")
        a(f"v_fma_f32 {v(S2)}, -{v(S1)}, {v(S1)}, {v(S2)}\nv_max_f32 {v(S2)}, 0, {v(S2)}\nv_add_f32 {v(S2)}, {f2u(1e-5):#x}, {v(S2)}")
        a(f"v_rsq_f32 {v(vst+2)}, {v(S2)}\ns_nop 0\nv_mov_b32 {v(vst+3)}, {v(vst+2)}")
        a(f"v_mul_f32 {v(S1)}, {v(S1)}, {v(vst+2)}\nv_sub_f32 {v(S1)}, 0, {v(S1)}\nv_mov_b32 {v(S2)}, {v(S1)}")
        for r in range(8):
            u = t + 2 * (r & 1)
            a(f"v_lshlrev_b32 {v(u)}, 16, {v(X+r)}\nv_and_b32 {v(u+1)}, 0xffff0000, {v(X+r)}")
            a(f"v_pk_fma_f32 {v(u,2)}, {v(u,2)}, {v(vst+2,2)}, {v(vst,2)}\nv_cvt_pk_bf16_f32 {v(X+r)}, {v(u)}, {v(u+1)}")
        a(f"s_lshr_b32 {s(sT0)}, {s(sId)}, 2\ns_mul_i32 {s(sT0)}, {s(sT0)}, 40\ns_lshl_b32 {s(sT1)}, {s(sWave)}, 2\ns_add_u32 {s(sT0)}, {s(sT0)}, {s(sT1)}\ns_lshl_b32 {s(sT0)}, {s(sT0)}, 10")
        a(f"s_and_b32 {s(sT1)}, {s(sM)}, 3\ns_lshl_b32 {s(sT1)}, {s(sT1)}, 7\ns_add_u32 {s(sT0)}, {s(sT0)}, {s(sT1)}\ns_add_u32 {s(sT0)}, {s(sT0)}, {XH:#x}")
        a(f"v_lshrrev_b32 {v(t+4)}, 2, {v(t+4)}\nv_lshrrev_b32 {v(t)}, 4, {v(lane)}\nv_lshl_add_u32 {v(t+4)}, {v(t)}, 10, {v(t+4)}\nv_bfe_u32 {v(t)}, {v(lane)}, 3, 1\nv_lshl_add_u32 {v(t+4)}, {v(t)}, 9, {v(t+4)}")
        a(f"s_mov_b32 {s(sJd)}, {s(sT0)}\nbuffer_store_dwordx4 {v(X,4)}, {v(t+4)}, {s(SRD,4)}, {s(sT0)} offen sc1")
        a(f"s_cmp_ge_u32 {s(sWave)}, 2\ns_cbranch_scc1 Lx1b\ns_add_u32 {s(sT0)}, {s(sT0)}, 32768\nbuffer_store_dwordx4 {v(X+4,4)}, {v(t+4)}, {s(SRD,4)}, {s(sT0)} offen sc1")
        a.label("Lx1b")
        a(f"s_cmp_ge_u32 {s(sC_)}, 40\ns_cbranch_scc1 Lw1c")
        a(f"v_lshrrev_b32 {v(t)}, 5, {v(lane)}\nv_lshlrev_b32 {v(t)}, 3, {v(t)}\nv_bfe_u32 {v(t+1)}, {v(lane)}, 2, 2\nv_add_u32 {v(t)}, {v(t)}, {v(t+1)}")
        a(f"s_lshl_b32 {s(sT0)}, {s(sWave)}, 12\ns_add_u32 {s(sT0)}, {s(sT0)}, {L_SCR}\nv_lshl_add_u32 {v(t)}, {v(t)}, 8, {s(sT0)}")
        a(f"v_bfe_u32 {v(t+1)}, {v(lane)}, 4, 1\nv_and_b32 {v(t+2)}, 3, {v(lane)}")
        a(f"v_mul_u32_u24 {v(t+3)}, 40, {v(t+1)}\nv_lshl_add_u32 {v(t+3)}, {v(t+2)}, 3, {v(t+3)}\nv_add_u32 {v(t+3)}, {v(t+3)}, {v(t)}")
        a(f"v_lshl_add_u32 {v(t+1)}, {v(t+1)}, 2, {v(t+2)}\nv_or_b32 {v(t+1)}, 0x0c0c0c00, {v(t+1)}")
        tab = [20, 22, 21, 23, 24, 14, 4, 4]
        lo = sum(x << (8 * i) for i, x in enumerate(tab[:4])); hi = sum(x << (8 * i) for i, x in enumerate(tab[4:]))
        a(f"s_mov_b32 {s(sT1)}, {hi:#x}\nv_mov_b32 {v(t+2)}, {lo:#x}\nv_perm_b32 {v(t+1)}, {s(sT1)}, {v(t+2)}, {v(t+1)}")
        a(f"v_lshl_add_u32 {v(t+1)}, {v(t+1)}, 3, {v(t)}")
        a("s_waitcnt vmcnt(1)")
        for T, (va, off) in enumerate(((t+3, 0), (t+3, 80), (t+1, 0), (t+1, 40))):
            for jj in range(2):
                a(f"ds_read_b64_tr_b16 {v(WF+4*T+2*jj,2)}, {v(va)} offset:{off + jj*1024}")
        a(f"s_mul_i32 {s(sT3)}, {s(sM)}, 40\ns_add_u32 {s(sT3)}, {s(sT3)}, {s(sC_)}\ns_lshl_b32 {s(sT0)}, {s(sT3)}, 12\ns_add_u32 {s(sT0)}, {s(sT0)}, {WQF:#x}")
        a(f"v_lshlrev_b32 {v(t)}, 4, {v(lane)}\ns_mov_b32 {s(sJs)}, {s(sT0)}")
        for T in range(4):
            a(f"s_waitcnt lgkmcnt({6-2*T})\nbuffer_store_dwordx4 {v(WF+4*T,4)}, {v(t)}, {s(SRD,4)}, {s(sT0)} offen offset:{T*1024} sc1")
        a.label("Lw1c")
        self.stamp("st0")
        a("s_waitcnt vmcnt(0)\ns_barrier")
        if OPT["rb"]:
            a(f"s_cmp_eq_u32 {s(sWave)}, 0\ns_cbranch_scc1 Lrb0")
            a(self.rb(t + 4, sJd))
            a(f"s_cmp_lg_u32 {s(sWave)}, 2\ns_cbranch_scc1 Lrb1")
            a(f"s_sub_u32 {s(sJd)}, {s(sJd)}, 8192\n" + self.rb(t + 4, sJd) + f"\ns_add_u32 {s(sJd)}, {s(sJd)}, 32768\n" + self.rb(t + 4, sJd) + f"\ns_add_u32 {s(sJd)}, {s(sJd)}, 4096\n" + self.rb(t + 4, sJd))
            a.label("Lrb1")
            a(f"s_cmp_ge_u32 {s(sC_)}, 40\ns_cbranch_scc1 Lrb0\nv_lshlrev_b32 {v(t)}, 6, {v(lane)}\n" + self.rb(t, sJs))
            a.label("Lrb0")
        a(f"s_cmp_lg_u32 {s(sWave)}, 0\ns_cbranch_scc1 Lp0")
        self.flag_store(F0, 2, 128, t)
        self.stamp("f0")
        def wgof(dst, vt, vm):
            pass
        a(f"v_lshlrev_b32 {v(t+4)}, 7, {v(lane)}\nv_add_u32 {v(t+5)}, 64, {v(lane)}\nv_min_u32 {v(t+5)}, 99, {v(t+5)}")
        a(f"v_bfe_u32 {v(t)}, {v(lane)}, 2, 2\nv_lshlrev_b32 {v(t)}, 1, {v(t)}\nv_and_b32 {v(t+1)}, 3, {v(lane)}\nv_lshl_add_u32 {v(t)}, {v(t+1)}, 6, {v(t)}")
        a(f"s_and_b32 {s(sT0)}, s2, 0x39\nv_add_u32 {v(t)}, {s(sT0)}, {v(t)}")
        a(f"v_bfe_u32 {v(t+1)}, {v(lane)}, 3, 1\nv_and_b32 {v(t+2)}, 7, {v(lane)}\nv_lshl_add_u32 {v(t+1)}, {v(t+2)}, 3, {v(t+1)}\ns_and_b32 {s(sT0)}, s2, 0xc6\nv_add_u32 {v(t+1)}, {s(sT0)}, {v(t+1)}")
        a(f"v_cmp_gt_u32 vcc, 16, {v(lane)}\ns_nop 1\nv_cndmask_b32 {v(t+6)}, {v(t+1)}, {v(t)}, vcc")
        a(f"v_lshlrev_b32 {v(t+5)}, 7, {v(t+5)}\nv_lshlrev_b32 {v(t+6)}, 7, {v(t+6)}")
        for j in range(3): a(f"v_add_u32 {v(t+4+j)}, {F0:#x}, {v(t+4+j)}")
        def cmp3():
            for j in range(3): a(f"v_xor_b32 {v(t+j)}, {s(sN)}, {v(t+j)}")
            a(f"v_or3_b32 {v(t)}, {v(t)}, {v(t+1)}, {v(t+2)}\nv_cmp_ne_u32 vcc, 0, {v(t)}")
        self.poll([(t+4, t), (t+5, t+1), (t+6, t+2)], cmp3, "0")
        a.label("Lp0")
        a(f"v_lshlrev_b32 {v(vB)}, 4, {v(lane)}\nv_lshlrev_b32 {v(t+6)}, 4, {v(lane)}\nv_lshlrev_b32 {v(vA)}, 4, v0")
        a(f"s_lshr_b32 {s(sT0)}, {s(sWave)}, 2\ns_mul_i32 {s(sT0)}, {s(sT0)}, 20\ns_and_b32 {s(sT1)}, {s(sWave)}, 3\ns_add_u32 {s(sT2)}, {s(sT0)}, {s(sT1)}")
        a(f"s_lshl_b32 {s(sT3)}, {s(sTb)}, 2\ns_add_u32 {s(sT3)}, {s(sT3)}, {s(sT1)}\ns_mul_i32 {s(sT3)}, {s(sT3)}, 40\ns_add_u32 {s(sT3)}, {s(sT3)}, {s(sT0)}\ns_lshl_b32 {s(sD)}, {s(sT3)}, 10\ns_add_u32 {s(sD)}, {s(sD)}, {XH:#x}")
        a(f"s_mul_i32 {s(sT1)}, {s(sM)}, 40\ns_add_u32 {s(sT2)}, {s(sT2)}, {s(sT1)}\ns_lshl_b32 {s(sA)}, {s(sT2)}, 12\ns_add_u32 {s(sA)}, {s(sA)}, {WQF:#x}")
        a(f"s_lshl_b32 {s(sB)}, {s(sWave)}, 12\ns_add_u32 {s(sB)}, {s(sB)}, {L_BIG}")
        a("s_barrier")
        self.stamp("f0seen")
        vm = VM()
        PT = WF
        a(f"v_cmp_gt_u32 vcc, 320, v0\ns_and_saveexec_b64 {s(sEx,2)}, vcc\ns_cbranch_execz Lmp1")
        a(f"s_mov_b32 {s(sT0)}, {MP1:#x}")
        for i in range(5):
            a(f"buffer_load_dwordx4 {v(PT+4*i,4)}, {v(vA)}, {s(SRD,4)}, {s(sT0)} offen sc1")
            if i < 4: a(f"s_add_u32 {s(sT0)}, {s(sT0)}, 5120")
        a.label("Lmp1")
        a(f"s_mov_b64 exec, {s(sEx,2)}")
        vm.add("P")
        def wdma(gr):
            o = f"s_add_u32 {s(sT0)}, {s(sA)}, {gr*16384}\ns_add_u32 m0, {s(sB)}, {(gr%3)*32768}\ns_nop 0\n"
            for i in range(4): o += f"buffer_load_dwordx4 {v(t+6)}, {s(SRD,4)}, {s(sT0)} offen offset:{i*1024} sc1 lds\n"
            vm.add(f"G{gr}", 4)
            return o
        def xld(gr):
            o = f"s_add_u32 {s(sT0)}, {s(sD)}, {gr*4096}\n"
            for i in range(4):
                o += f"buffer_load_dwordx4 {v(X+16*gr+4*i,4)}, {v(t+6)}, {s(SRD,4)}, {s(sT0)} offen offset:{i*1024} sc1\n"
                vm.add(f"X{4*gr+i}")
            return o
        a(wdma(0)); a(xld(0))
        self.stamp("iss1")
        a(f"v_cmp_gt_u32 vcc, 320, v0\ns_and_saveexec_b64 {s(sEx,2)}, vcc\ns_cbranch_execz Lmp2")
        a(vm.wait("P"))
        for j in range(4):
            a(f"v_add_f32 {v(PT+j)}, {v(PT+j)}, {v(PT+4+j)}\nv_add_f32 {v(PT+8+j)}, {v(PT+8+j)}, {v(PT+12+j)}")
            a(f"v_add_f32 {v(PT+j)}, {v(PT+j)}, {v(PT+16+j)}\nv_add_f32 {v(PT+j)}, {v(PT+j)}, {v(PT+8+j)}")
        a(f"v_cmp_le_u32 vcc, 160, v0\nv_mov_b32 {v(t+2)}, 1.0\ns_nop 0\nv_cndmask_b32 {v(t+2)}, 0, {v(t+2)}, vcc")
        for j in (0, 2):
            a(f"v_cvt_pk_bf16_f32 {v(t)}, {v(PT+j)}, {v(PT+j+1)}\nv_lshlrev_b32 {v(PT+j)}, 16, {v(t)}\nv_and_b32 {v(PT+j+1)}, 0xffff0000, {v(t)}")
            a(f"v_add_f32 {v(PT+j)}, {v(PT+j)}, {v(t+2)}\nv_add_f32 {v(PT+j+1)}, {v(PT+j+1)}, {v(t+2)}")
            a(f"v_cvt_pk_bf16_f32 {v(t)}, {v(PT+j)}, {v(PT+j+1)}\nv_lshlrev_b32 {v(PT+j)}, 16, {v(t)}\nv_and_b32 {v(PT+j+1)}, 0xffff0000, {v(t)}")
        a(f"v_add_u32 {v(t)}, {L_S}, {v(vA)}\nv_add_u32 {v(t+1)}, {L_G-2560}, {v(vA)}\nv_cndmask_b32 {v(t)}, {v(t)}, {v(t+1)}, vcc")
        a(f"ds_write_b128 {v(t)}, {v(PT,4)}")
        a.label("Lmp2")
        a(f"s_mov_b64 exec, {s(sEx,2)}")
        self.stamp("tab")
        self.stamp("iss2")
        a(vm.wait("G0") + "\ns_waitcnt lgkmcnt(0)\ns_barrier")
        self.stamp("p1go")
        a(f"v_bfe_u32 {v(t)}, {v(lane)}, 3, 1\nv_lshlrev_b32 {v(t)}, 4, {v(t)}\nv_lshrrev_b32 {v(t+1)}, 5, {v(lane)}\nv_lshl_add_u32 {v(t)}, {v(t+1)}, 3, {v(t)}")
        a(f"v_and_b32 {v(t+2)}, 7, {v(lane)}\nv_add_u32 {v(t)}, {v(t)}, {v(t+2)}")
        a(f"s_lshr_b32 {s(sT0)}, {s(sWave)}, 2\ns_mul_i32 {s(sT1)}, {s(sT0)}, 1280\ns_add_u32 {s(sT1)}, {s(sT1)}, {L_G}\nv_lshl_add_u32 {v(t)}, {v(t)}, 2, {s(sT1)}")
        for i in range(10): a(f"ds_read_b32 {v(GD+i)}, {v(t)} offset:{128*i}")
        a(f"s_add_u32 {s(sT1)}, {s(sT1)}, {L_S-L_G}\nv_lshl_add_u32 {v(vA)}, {v(t+1)}, 5, {s(sT1)}")
        a(f"s_lshl_b32 {s(sT0)}, {s(sT0)}, 14\ns_add_u32 {s(sT0)}, {s(sT0)}, {L_BIG}\nv_add_u32 {v(vB)}, {s(sT0)}, {v(vB)}")
        vW2 = t + 7
        a(f"v_add_u32 {v(vW2)}, 65536, {v(vB)}")
        sc = Sched()
        def ldS(u, j): sc.lds(f"ds_read_b128 {v(SF+8*(u&1)+4*j,4)}, {v(vA)} offset:{u*64+16*j}", f"S{u}_{j}")
        def xform(u):
            out = []
            sf = SF + 8 * (u & 1); hb = HB + 4 * (u & 1); g = GD + (u >> 1)
            D = "row_mask:0xf bank_mask:0xf"
            for j in (0, 2):
                x = X + 4 * u + j; n = 8 * (u & 1) + 2 * j
                out.append((f"v_lshlrev_b32 {v(t)}, 16, {v(x)}\nv_and_b32 {v(t+1)}, 0xffff0000, {v(x)}", None))
                out.append((f"v_lshlrev_b32 {v(t+2)}, 16, {v(x+1)}\nv_and_b32 {v(t+3)}, 0xffff0000, {v(x+1)}", None))
                out.append((f"v_fmac_f32_dpp {v(sf+2*j)}, {v(g)}, {v(t)} row_newbcast:{n} {D}\nv_fmac_f32_dpp {v(sf+2*j+1)}, {v(g)}, {v(t+1)} row_newbcast:{n+1} {D}", f"S{u}_{j>>1}"))
                out.append((f"v_fmac_f32_dpp {v(sf+2*j+2)}, {v(g)}, {v(t+2)} row_newbcast:{n+2} {D}\nv_fmac_f32_dpp {v(sf+2*j+3)}, {v(g)}, {v(t+3)} row_newbcast:{n+3} {D}", None))
                out.append((f"v_cvt_pk_bf16_f32 {v(hb+j)}, {v(sf+2*j)}, {v(sf+2*j+1)}", None))
                out.append((f"v_cvt_pk_bf16_f32 {v(hb+j+1)}, {v(sf+2*j+2)}, {v(sf+2*j+3)}", None))
            return out
        def emit_x(lst):
            for txt, tag in lst:
                if tag: sc.use(txt, [tag])
                else: sc.op(txt)
        def ldW1(u, T):
            gr, up = divmod(u, 4); slot = gr % 3
            off = slot * 32768 + up * 4096 + T * 1024
            va = vB
            if off >= 65536: va, off = vW2, off - 65536
            sc.lds(f"ds_read_b128 {v(WF+16*(u&1)+4*T,4)}, {v(va)} offset:{off}", f"W{u}_{T}")
        ldS(0, 0); ldS(0, 1); ldS(1, 0); ldS(1, 1)
        for T in range(4): ldW1(0, T)
        sc.op(wdma(1))
        sc.op(vm.wait("X0"))
        emit_x(xform(0))
        sc.op("s_nop 0")
        side = self.sj1_pieces()
        for u in range(20):
            nb = u + 1 < 20 and (u + 1) % 4 == 0
            xn = xform(u + 1) if u + 1 < 20 else []
            if u % 4 == 0: sc.op(f"s_setprio 2")
            if u % 4 == 2: sc.op(f"s_setprio 0")
            for T in range(4):
                c = "0" if u == 0 else v(ACC+16*T,16)
                sc.use(f"v_mfma_f32_32x32x16_bf16 {v(ACC+16*T,16)}, {v(WF+16*(u&1)+4*T,4)}, {v(HB+4*(u&1),4)}, {c}", [f"W{u}_{T}"])
                if nb and T == 0:
                    g2 = (u + 1) // 4
                    sc.op(self.stamp_txt(f"g{g2}b"))
                    sc.op(vm.wait(f"G{g2}") + "\ns_waitcnt lgkmcnt(0)\ns_barrier\ns_setprio 3")
                    sc.op(self.stamp_txt(f"g{g2}a", True))
                if u + 1 < 20: ldW1(u + 1, T)
                if T == 0 and u + 1 < 20: sc.op(vm.wait(f"X{u+1}"))
                emit_x(xn[3*T:3*T+3])
                if u == 18 and T == 3: sc.op("s_nop 0")
                if u + 2 < 20 and T in (1, 3): ldS(u + 2, T >> 1)
                if T == 3:
                    if u == 0: sc.op(xld(1))
                    if u == 1: sc.op(wdma(2))
                    if u == 2: sc.op(xld(2))
                    if u == 4: sc.op(xld(3))
                    if u == 6: sc.op(xld(4))
                    if nb and g2 in (1, 2): sc.op(wdma(g2 + 2))
                    if 8 <= u < 8 + len(side) and not OPT.get("noside"):
                        sc.op(side[u - 8]); vm.add("side", 4 if side[u - 8] else 0)
        sc.op("s_setprio 0")
        sc.render(a, loop=False)
        self.stamp("p1loop")
        a("s_nop 7\ns_barrier")
        a(f"s_lshl_b32 {s(sT0)}, {s(sWave)}, 13\ns_add_u32 {s(sT0)}, {s(sT0)}, {L_BIG+32768}\nv_lshl_add_u32 {v(vA)}, {v(lane)}, 4, {s(sT0)}")
        a(f"s_xor_b32 {s(sT1)}, {s(sWave)}, 4\ns_lshl_b32 {s(sT1)}, {s(sT1)}, 13\ns_add_u32 {s(sT1)}, {s(sT1)}, {L_BIG+32768}\nv_lshl_add_u32 {v(vB)}, {v(lane)}, 4, {s(sT1)}")
        a(f"s_cmp_ge_u32 {s(sWave)}, 4\ns_cbranch_scc1 Lx1")
        send0 = [8, 12, 24, 28, 48, 52, 56, 60]; send1 = [0, 4, 16, 20, 32, 36, 40, 44]
        for i, r in enumerate(send0): a(f"ds_write_b128 {v(vA)}, {v(ACC+r,4)} offset:{i*1024}")
        a("s_branch Lx2")
        a.label("Lx1")
        for i, r in enumerate(send1): a(f"ds_write_b128 {v(vA)}, {v(ACC+r,4)} offset:{i*1024}")
        for i, r in enumerate(send0):
            for j in range(4): a(f"v_mov_b32 {v(ACC+send1[i]+j)}, {v(ACC+r+j)}")
        a.label("Lx2")
        a("s_waitcnt lgkmcnt(0)\ns_barrier")
        for i in range(8): a(f"ds_read_b128 {v(X+4*i,4)}, {v(vB)} offset:{i*1024}")
        def add(i, wait):
            a(f"s_waitcnt lgkmcnt({wait})")
            for j in range(4): a(f"v_add_f32 {v(ACC+send1[i]+j)}, {v(ACC+send1[i]+j)}, {v(X+4*i+j)}")
        for i in range(8): add(i, 7 - i)
        Qv, Kv, Mv = ACC, ACC + 16, ACC + 32
        o = X + 32
        for j in range(4): a(f"v_cvt_pk_bf16_f32 {v(o+j)}, {v(Kv+2*j)}, {v(Kv+2*j+1)}")
        for j in range(4): a(f"v_cvt_pk_bf16_f32 {v(o+4+j)}, {v(Mv+2*j)}, {v(Mv+2*j+1)}")
        for j in range(2): a(f"v_cvt_pk_bf16_f32 {v(o+8+j)}, {v(Mv+8+2*j)}, {v(Mv+9+2*j)}")
        a(f"v_mov_b32 {v(o+10)}, 0x3f80\nv_mov_b32 {v(o+11)}, 0")
        a(f"s_lshl_b32 {s(sT0)}, {s(sM)}, 4\ns_add_u32 {s(sT0)}, {s(sT0)}, {s(sTb)}\ns_mul_i32 {s(sT0)}, {s(sT0)}, {SLOT}\ns_add_u32 {s(sT5)}, {s(sT0)}, {KV:#x}\ns_add_u32 {s(sT0)}, {s(sT0)}, {KV - L_BIG:#x}")
        a(f"s_lshr_b32 {s(sT1)}, {s(sWave)}, 2\ns_mul_i32 {s(sT1)}, {s(sT1)}, {HOFF}\ns_add_u32 {s(sT4)}, {s(sT1)}, {L_BIG}")
        a(f"s_and_b32 {s(sT1)}, {s(sWave)}, 3\ns_lshl_b32 {s(sT2)}, {s(sT1)}, 10\ns_add_u32 {s(sT2)}, {s(sT2)}, {s(sT4)}")
        a(f"s_mul_i32 {s(sT1)}, {s(sT1)}, {32*ROWB}\ns_add_u32 {s(sT1)}, {s(sT1)}, {s(sT4)}\ns_add_u32 {s(sT1)}, {s(sT1)}, 4096")
        a(f"v_and_b32 {v(t+1)}, 31, {v(lane)}\nv_mul_u32_u24 {v(t+1)}, {ROWB}, {v(t+1)}\nv_add_u32 {v(t+1)}, {s(sT1)}, {v(t+1)}")
        a(f"v_lshrrev_b32 {v(t+2)}, 5, {v(lane)}\nv_lshl_add_u32 {v(t+2)}, {v(t+2)}, 4, {v(t+1)}")
        a(f"v_lshl_add_u32 {v(t+3)}, {v(lane)}, 4, {s(sT2)}\nv_lshl_add_u32 {v(t+4)}, {v(lane)}, 4, {s(sT1)}")
        a(f"ds_write2_b64 {v(t+2)}, {v(o+4,2)}, {v(o+6,2)} offset0:0 offset1:1")
        a(f"ds_write_b64 {v(t+2)}, {v(o+8,2)} offset:32\nds_write_b64 {v(t+1)}, {v(o+10,2)} offset:40")
        a(f"ds_write_b128 {v(t+3)}, {v(o,4)}")
        a(f"buffer_store_dwordx4 {v(o,4)}, {v(t+3)}, {s(SRD,4)}, {s(sT0)} offen sc1")
        a(f"s_waitcnt lgkmcnt(1)\nds_read_b128 {v(o+20,4)}, {v(t+4)}\nds_read_b128 {v(o+24,4)}, {v(t+4)} offset:1024")
        a(f"s_waitcnt lgkmcnt(1)\nbuffer_store_dwordx4 {v(o+20,4)}, {v(t+4)}, {s(SRD,4)}, {s(sT0)} offen sc1")
        a(f"s_mov_b32 exec_hi, 0xffff\ns_waitcnt lgkmcnt(0)\nbuffer_store_dwordx4 {v(o+24,4)}, {v(t+4)}, {s(SRD,4)}, {s(sT0)} offen offset:1024 sc1\ns_mov_b64 exec, -1")
        a(f"v_lshlrev_b32 {v(t)}, 4, {v(lane)}")
        a(f"s_mov_b32 {s(sT3)}, {f2u(20**-0.5*LOG2E):#x}")
        for j in range(8): a(f"v_mul_f32 {v(Qv+j)}, {s(sT3)}, {v(Qv+j)}")
        for j in range(4): a(f"v_mul_f32 {v(Mv+12+j)}, {s(sT3)}, {v(Mv+12+j)}")
        for j in range(4): a(f"v_cvt_pk_bf16_f32 {v(o+12+j)}, {v(Qv+2*j)}, {v(Qv+2*j+1)}")
        for j in range(2): a(f"v_cvt_pk_bf16_f32 {v(o+16+j)}, {v(Mv+12+2*j)}, {v(Mv+13+2*j)}")
        a(f"s_lshl_b32 {s(sT0)}, {s(sWave)}, 10\ns_add_u32 {s(sT0)}, {s(sT0)}, {L_X}\nv_add_u32 {v(t)}, {s(sT0)}, {v(t)}")
        a(f"ds_write_b128 {v(t)}, {v(o+12,4)}")
        a(f"s_lshl_b32 {s(sT0)}, {s(sWave)}, 8\ns_add_u32 {s(sT0)}, {s(sT0)}, {L_X+8192}\nv_and_b32 {v(t+1)}, 31, {v(lane)}\nv_lshl_add_u32 {v(t+1)}, {v(t+1)}, 3, {s(sT0)}")
        a(f"ds_write_b64 {v(t+1)}, {v(o+16,2)}")
        a("s_waitcnt vmcnt(0) lgkmcnt(0)\ns_barrier")
        a(f"s_mov_b32 {s(sPoll)}, {s(sT5)}\ns_cmp_lg_u32 {s(sWave)}, 0\ns_cbranch_scc1 Lf1")
        self.flag_store(F1, sId, 128, t)
        a.label("Lf1")
        if OPT["rb"]:
            a(f"v_lshlrev_b32 {v(t)}, 7, v0\nv_cmp_gt_u32 vcc, 176, v0\ns_and_saveexec_b64 {s(sEx,2)}, vcc\ns_cbranch_execz Lrb2")
            a(self.rb(t, sPoll, 0))
            a.label("Lrb2")
            a(f"s_mov_b64 exec, {s(sEx,2)}")
        self.stamp("f1")
        R.free("X", "ACC", "GD", "WF", "SF", "HB", "vA", "vB", "vst")

    def capture(self, f, *args):
        keep = self.a; self.a = Asm(); self.a.uid = keep.uid + 1000; f(*args); o = self.a.text(); self.a = keep
        return o
    def sj1_pieces(self):
        return [self.capture(self.sj1_gemv)]
    def sj1_unit(self):
        a, R = self.a, self.R
        t, lane = UA + 4, R["lane"]
        U, st, cg = sT2, sT3, sT4
        a.c("side job 1: unit set-up")
        a(f"s_lshl_b32 {s(U)}, s2, 3\ns_add_u32 {s(U)}, {s(U)}, {s(sWave)}")
        a(f"v_lshrrev_b32 {v(t)}, 3, {v(lane)}\nv_and_b32 {v(t+1)}, 7, {v(lane)}\nv_lshlrev_b32 {v(t+1)}, 4, {v(t+1)}")
        def four(pa, pb, inc):
            a(f"s_mov_b64 {s(sPa,2)}, {s(pa,2)}\ns_mov_b64 {s(sPb,2)}, {s(pb,2)}")
            for i in range(4): a(f"v_add_u32 {v(UA+i)}, {inc[i]:#x}, {v(t)}")
        a(f"s_cmp_ge_u32 {s(U)}, 1080\ns_cbranch_scc1 Lsj_d")
        a(f"s_mul_i32 {s(st)}, {s(U)}, 2428\ns_lshr_b32 {s(st)}, {s(st)}, 16\ns_mul_i32 {s(sT0)}, {s(st)}, 27\ns_sub_u32 {s(cg)}, {s(U)}, {s(sT0)}")
        a(f"s_mul_i32 {s(sT0)}, {s(st)}, {16*3456}\ns_lshl_b32 {s(sT1)}, {s(cg)}, 7\ns_add_u32 {s(sT0)}, {s(sT0)}, {s(sT1)}")
        a(f"v_mul_u32_u24 {v(t)}, 3456, {v(t)}\nv_add3_u32 {v(t)}, {v(t)}, {v(t+1)}, {s(sT0)}")
        four(P_WG, P_WU, (0, 8*3456, 0, 8*3456))
        a(f"s_mul_i32 {s(sJd)}, {s(cg)}, 160\ns_add_u32 {s(sJd)}, {s(sJd)}, {s(st)}\ns_lshl_b32 {s(sJd)}, {s(sJd)}, 10\ns_add_u32 {s(sJd)}, {s(sJd)}, {WGF:#x}")
        a(f"s_mov_b32 {s(sJs)}, 40960\ns_mov_b32 {s(sJt)}, 0\ns_branch Lsj_e")
        a.label("Lsj_d")
        a(f"s_cmp_ge_u32 {s(U)}, 1620\ns_cbranch_scc1 Lsj_o")
        a(f"s_sub_u32 {s(U)}, {s(U)}, 1080\ns_mul_i32 {s(st)}, {s(U)}, 6554\ns_lshr_b32 {s(st)}, {s(st)}, 16\ns_mul_i32 {s(sT0)}, {s(st)}, 10\ns_sub_u32 {s(cg)}, {s(U)}, {s(sT0)}")
        a(f"s_mul_i32 {s(sT0)}, {s(st)}, {32*1280}\ns_lshl_b32 {s(sT1)}, {s(cg)}, 7\ns_add_u32 {s(sT0)}, {s(sT0)}, {s(sT1)}")
        a(f"v_mul_u32_u24 {v(t)}, 1280, {v(t)}\nv_add3_u32 {v(t)}, {v(t)}, {v(t+1)}, {s(sT0)}")
        four(P_WD, P_WD, (0, 10240, 20480, 30720))
        a(f"s_mul_i32 {s(sJd)}, {s(cg)}, 216\ns_add_u32 {s(sJd)}, {s(sJd)}, {s(st)}\ns_lshl_b32 {s(sJd)}, {s(sJd)}, 10\ns_add_u32 {s(sJd)}, {s(sJd)}, {WDF:#x}")
        a(f"s_mov_b32 {s(sJs)}, 55296\ns_mov_b32 {s(sJt)}, 1\ns_branch Lsj_e")
        a.label("Lsj_o")
        a(f"s_cmp_ge_u32 {s(U)}, 1820\ns_cselect_b32 {s(sJt)}, 2, 1\ns_min_u32 {s(U)}, {s(U)}, 1819")
        a(f"s_sub_u32 {s(U)}, {s(U)}, 1620\ns_mul_i32 {s(st)}, {s(U)}, 6554\ns_lshr_b32 {s(st)}, {s(st)}, 16\ns_mul_i32 {s(sT0)}, {s(st)}, 10\ns_sub_u32 {s(cg)}, {s(U)}, {s(sT0)}")
        a(f"s_mul_i32 {s(sJd)}, {s(cg)}, 80\ns_add_u32 {s(sJd)}, {s(sJd)}, {s(st)}\ns_lshl_b32 {s(sJd)}, {s(sJd)}, 10\ns_add_u32 {s(sJd)}, {s(sJd)}, {WOF:#x}")
        a(f"s_mov_b32 {s(sJs)}, 20480\ns_lshl_b32 {s(sT1)}, {s(cg)}, 7\ns_cmp_ge_u32 {s(st)}, 16\ns_cbranch_scc1 Lsj_r")
        a(f"s_mul_i32 {s(sT0)}, {s(st)}, {40*1280}\ns_add_u32 {s(sT0)}, {s(sT0)}, {s(sT1)}")
        a(f"v_mul_u32_u24 {v(t)}, 1280, {v(t)}\nv_add3_u32 {v(t)}, {v(t)}, {v(t+1)}, {s(sT0)}")
        four(P_WO, P_WO, (0, 8*1280, 20*1280, 28*1280))
        a("s_branch Lsj_e")
        a.label("Lsj_r")
        a(f"s_sub_u32 {s(st)}, {s(st)}, 16\ns_mul_i32 {s(sT0)}, {s(st)}, {160*1280}\ns_add_u32 {s(sT0)}, {s(sT0)}, {16*1280}\ns_add_u32 {s(sT0)}, {s(sT0)}, {s(sT1)}")
        a(f"v_and_b32 {v(t)}, 3, {v(t)}\nv_lshrrev_b32 {v(t+2)}, 5, {v(lane)}\nv_mul_u32_u24 {v(t+2)}, 20, {v(t+2)}\nv_add_u32 {v(t)}, {v(t)}, {v(t+2)}")
        a(f"v_mul_u32_u24 {v(t)}, 1280, {v(t)}\nv_add3_u32 {v(t)}, {v(t)}, {v(t+1)}, {s(sT0)}")
        four(P_WO, P_WO, (0, 40*1280, 80*1280, 120*1280))
        a.label("Lsj_e")
        a(f"v_bfe_u32 {v(t)}, {v(lane)}, 4, 1\nv_lshrrev_b32 {v(t+1)}, 5, {v(lane)}\ns_cmp_eq_u32 {s(sJt)}, 0\ns_cselect_b32 {s(sT0)}, 4, 2\ns_cselect_b32 {s(sT1)}, 2, 4")
        a(f"v_lshlrev_b32 {v(t)}, {s(sT0)}, {v(t)}\nv_lshlrev_b32 {v(t+1)}, {s(sT1)}, {v(t+1)}\nv_bfe_u32 {v(t+2)}, {v(lane)}, 2, 2\nv_add3_u32 {v(t)}, {v(t)}, {v(t+1)}, {v(t+2)}")
        a(f"s_lshl_b32 {s(sUL)}, {s(sWave)}, 12\ns_add_u32 {s(sUL)}, {s(sUL)}, {L_SCR}\nv_lshl_add_u32 {v(t)}, {v(t)}, 7, {s(sUL)}")
        a(f"v_and_b32 {v(t+1)}, 3, {v(lane)}\nv_lshl_add_u32 {v(t)}, {v(t+1)}, 3, {v(t)}")
    def sj1_load(self, i):
        return f"s_add_u32 m0, {s(sUL)}, {i*1024}\ns_nop 0\nglobal_load_lds_dwordx4 {v(UA+i)}, {s(sPa if i < 2 else sPb, 2)}"
    def sj1_tr(self):
        a = self.a; tmp = UA - 16; t = UA + 4
        a.c("side job 1: transpose")
        a(f"s_lshl_b32 {s(sT0)}, s2, 3\ns_add_u32 {s(sT0)}, {s(sT0)}, {s(sWave)}\ns_and_b32 {s(sT0)}, {s(sT0)}, 255\ns_lshl_b32 {s(sT0)}, {s(sT0)}, 12\ns_add_u32 {s(sT0)}, {s(sT0)}, {JUNK:#x}")
        a(f"s_cmp_eq_u32 {s(sJt)}, 2\ns_cselect_b32 {s(sJd)}, {s(sT0)}, {s(sJd)}\ns_cselect_b32 {s(sJs)}, 1024, {s(sJs)}")
        for T in range(4):
            for jj in range(2): a(f"ds_read_b64_tr_b16 {v(tmp+4*T+2*jj,2)}, {v(t)} offset:{T*32 + jj*1024}")
    def sj1_st(self, T, vD):
        return f"buffer_store_dwordx4 {v(UA-16+4*T,4)}, {v(vD)}, {s(SRD,4)}, {s(sJd)} offen sc1\ns_add_u32 {s(sJd)}, {s(sJd)}, {s(sJs)}"
    def sj1_gemv(self):
        a, R = self.a, self.R
        t = R["vst"]
        a(f"s_min_u32 {s(sT2)}, s2, 199\ns_mul_i32 {s(sT3)}, {s(sT2)}, 1639\ns_lshr_b32 {s(sT3)}, {s(sT3)}, 16\ns_mul_i32 {s(sT0)}, {s(sT3)}, 40\ns_sub_u32 {s(sT2)}, {s(sT2)}, {s(sT0)}")
        a(f"s_mul_i32 {s(sG2)}, {s(sT3)}, 10240\ns_lshl_b32 {s(sT0)}, {s(sT2)}, 8\ns_add_u32 {s(sG2)}, {s(sG2)}, {s(sT0)}\ns_add_u32 {s(sG2)}, {s(sG2)}, {MP2:#x}")
        a(f"s_lshl_b32 {s(sT2)}, {s(sT2)}, 7\ns_add_u32 {s(sT2)}, {s(sT2)}, 2560")
        self.gemv_issue(sT2, sT3, R["gW"], R["gC"], t, 2)
    def last_arriver(self, off, n, label):
        a, R = self.a, self.R; t = R["t"]
        a(f"v_mov_b32 {v(t)}, 1\nv_mov_b32 {v(t+1)}, {off}\ns_waitcnt lgkmcnt(0)\ns_mov_b64 exec, 1")
        a(f"ds_add_rtn_u32 {v(t)}, {v(t+1)}, {v(t)}\ns_waitcnt lgkmcnt(0)\ns_mov_b64 exec, -1\nv_readfirstlane_b32 {s(sT3)}, {v(t)}")
        a(f"s_cmp_lg_u32 {s(sT3)}, {n-1}\ns_cbranch_scc1 {label}")
    def poll16(self, base, which, label, minval=None, extra=None):
        a, R = self.a, self.R; lane = R["lane"]; p = 132
        a(f"v_and_b32 {v(p)}, 15, {v(lane)}")
        if which == "row": a(f"s_lshl_b32 {s(sT0)}, {s(sTb)}, 11\nv_lshlrev_b32 {v(p)}, 7, {v(p)}")
        else: a(f"s_lshl_b32 {s(sT0)}, {s(sM)}, 7\nv_lshlrev_b32 {v(p)}, 11, {v(p)}")
        a(f"s_add_u32 {s(sT0)}, {s(sT0)}, {base:#x}\nv_add_u32 {v(p)}, {s(sT0)}, {v(p)}")
        if extra: extra(p)
        if minval is None:
            cmp = lambda: a(f"v_cmp_ne_u32 vcc, {s(sN)}, {v(p+1)}")
        else:
            cmp = lambda: a(f"v_subrev_u32 {v(p+1)}, {s(sN)}, {v(p+1)}\nv_subrev_u32 {v(p+1)}, {minval}, {v(p+1)}\nv_cmp_lt_u32 vcc, {7-minval}, {v(p+1)}")
        self.poll([(p, p + 1)], cmp, label)

    def pin_list(self, fp):
        nf = 3 - fp
        wo = [("o", f, i) for i in range(5) for f in range(nf)]
        wd = [("d", f, j) for j in range(14) for f in range(nf)]
        return wo, wd
    def wo_off(self, fp, f, i):
        return ((3 * fp + f) * 20 + (4 * i if i < 4 else 16)) * 1024
    def wd_off(self, fp, f, j):
        return ((3 * fp + f) * 54 + 8 * (j >> 1) + (j & 1)) * 1024

    def p2(self):
        a, R = self.a, self.R
        t, lane = R["t"], R["lane"]
        S = S_AT
        R.alloc("Qr", 2, at=10); R.alloc("Qm", 8, at=12); R.alloc("SA", 32, at=20); R.alloc("SB", 32, at=52); R.alloc("O", 32, at=84)
        R.alloc("Km", 4, at=116); R.alloc("V", 8, at=120); R.alloc("KR", 4, at=128)
        self.gemv_math(R["gW"], R["gC"], PIN, t, 2)
        self.sj1_unit()
        for n, r in (("vK", t + 2), ("vR", t + 3), ("vV", t + 4), ("vDma", t + 5), ("vM", t + 6), ("vT0", 133)): R.names[n] = (r, 1)
        a(f"s_lshr_b32 {s(sT0)}, {s(sWave)}, 2\ns_mul_i32 {s(S['sHH'])}, {s(sT0)}, {HOFF}\ns_add_u32 {s(S['sHH'])}, {s(S['sHH'])}, {L_BIG}")
        a(f"s_bfe_u32 {s(S['sKH'])}, {s(sWave)}, 0x10001\ns_mul_i32 {s(S['sKV'])}, {s(sM)}, {16*SLOT}\ns_add_u32 {s(S['sKV'])}, {s(S['sKV'])}, {KV:#x}")
        a(f"s_and_b32 {s(sT1)}, {s(sWave)}, 1\ns_lshl_b32 {s(sT1)}, {s(sT1)}, 1\ns_lshl_b32 {s(sT0)}, {s(sT0)}, 2\ns_add_u32 {s(sT0)}, {s(sT0)}, {s(sT1)}")
        a(f"s_lshl_b32 {s(sT1)}, {s(sT0)}, 10\ns_add_u32 {s(sT1)}, {s(sT1)}, {L_X}\nv_lshl_add_u32 {v(132)}, {v(lane)}, 4, {s(sT1)}")
        a(f"s_lshl_b32 {s(sT1)}, {s(sT0)}, 8\ns_add_u32 {s(sT1)}, {s(sT1)}, {L_X+8192}\nv_lshl_add_u32 {v(133)}, {v(lane)}, 3, {s(sT1)}")
        a(f"ds_read_b128 {v(R['Qm'],4)}, v132\nds_read_b128 {v(R['Qm']+4,4)}, v132 offset:1024\nds_read_b64 {v(R['Qr'],2)}, v133")
        attn.attn_setup(a, R, S, L_BIG)
        a(attn.dma_skip(S))
        a(f"s_cmp_lg_u32 {s(sWave)}, 0\ns_cbranch_scc1 Lq1")
        self.poll16(F1, "col", "1")
        a.label("Lq1")
        a("s_waitcnt lgkmcnt(0)\ns_barrier")
        self.stamp("f1seen")
        a(attn.dma_chunk(R, S, SRD))
        a(f"s_cmp_lg_u32 {s(sWave)}, 3\ns_cbranch_scc1 Lq3\ns_cmp_ge_u32 s2, 200\ns_cbranch_scc1 Lq3")
        self.gemv_final(sG2, PIN, t, 8)
        a.label("Lq3")
        attn.attn_head(a, R)
        vD = R["vDma"]
        trip = lambda *x, **k: attn.attn_trip(a, R, S, SRD, "fast", *x, **k)
        trip([self.sj1_load(0), self.sj1_load(1)])
        self.stampw("a1")
        for c in (2, 3): trip([self.sj1_load(c)])
        trip()
        self.stampw("a4")
        self.sj1_tr()
        trip(["s_nop 0", self.sj1_st(0, vD), self.sj1_st(1, vD)], younger=-1)
        trip([self.sj1_st(2, vD), self.sj1_st(3, vD)])
        self.stampw("a6")
        trip()
        self.last_arriver(L_BAD + 8, 8, "Lq2")
        self.flag_store(FR, 2, 128, t)
        a.label("Lq2")
        self.stampw("a7")
        trip()
        def frloads():
            for j in range(4): a(f"buffer_load_dword {v(PIN+j)}, v132, {s(SRD,4)}, {s(sT5)} offen sc1\nv_add_u32 v132, 8192, v132")
            a(f"v_add_u32 v132, {(-32768) & 0xffffffff:#x}, v132")
        a(f"s_mov_b32 {s(sT5)}, {FR:#x}\nv_lshlrev_b32 v132, 7, {v(lane)}\ns_cmp_lg_u32 {s(sWave)}, 7\ns_cbranch_scc1 Lfr0")
        frloads()
        a.label("Lfr0")
        trip()
        self.stampw("a9")
        a(f"s_cmp_lg_u32 {s(sWave)}, 7\ns_cbranch_scc1 Lfr2\ns_mov_b32 {s(sPoll)}, {POLL_MAX}")
        a.label("Lfr1")
        for j in range(4): a(f"v_xor_b32 {v(PIN+j)}, {s(sN)}, {v(PIN+j)}")
        a(f"v_or3_b32 {v(PIN)}, {v(PIN)}, {v(PIN+1)}, {v(PIN+2)}\nv_or_b32 {v(PIN)}, {v(PIN)}, {v(PIN+3)}\nv_cmp_ne_u32 vcc, 0, {v(PIN)}\ns_cbranch_vccz Lfr2")
        frloads()
        a(f"s_waitcnt vmcnt(0)\ns_sub_u32 {s(sPoll)}, {s(sPoll)}, 1\ns_cmp_gt_i32 {s(sPoll)}, 0\ns_cbranch_scc1 Lfr1")
        a.label("Lfr2")
        NROLL = 9
        a(f"s_and_b32 {s(sT0)}, {s(sMB)}, 7\ns_and_b32 {s(sT1)}, {s(sWave)}, 3\ns_mul_i32 {s(sA)}, {s(sT0)}, 100\ns_add_u32 {s(sA)}, {s(sA)}, {s(sT1)}\ns_lshl_b32 {s(sA)}, {s(sA)}, 10\ns_add_u32 {s(sA)}, {s(sA)}, {WOF:#x}")
        a(f"s_mul_i32 {s(sB)}, {s(sT0)}, 270\ns_lshl_b32 {s(sT1)}, {s(sT1)}, 1\ns_add_u32 {s(sB)}, {s(sB)}, {s(sT1)}\ns_lshl_b32 {s(sB)}, {s(sB)}, 10\ns_add_u32 {s(sB)}, {s(sB)}, {WDF:#x}")
        a(f"s_sub_u32 {s(sC_)}, {s(sB)}, {s(sA)}\ns_lshr_b32 {s(sD)}, {s(sWave)}, 2")
        loads = []
        for n in range(30):
            offs = []
            for fp in range(2):
                wo, wd = self.pin_list(fp)
                if n < len(wo): offs.append((0, self.wo_off(fp, *wo[n][1:])))
                else: offs.append((1, self.wd_off(fp, *wd[n - 10][1:])))
            txt = f"s_cmp_lg_u32 {s(sD)}, 0\ns_mov_b32 {s(sT4)}, {offs[0][1]:#x}\ns_cmov_b32 {s(sT4)}, {offs[1][1]:#x}\n"
            if offs[0][0] != offs[1][0]: txt += f"s_cselect_b32 {s(sT3)}, {s(sB)}, {s(sA)}\ns_add_u32 {s(sT4)}, {s(sT4)}, {s(sT3)}\n"
            else: txt += f"s_add_u32 {s(sT4)}, {s(sT4)}, {s(sB if offs[0][0] else sA)}\n"
            txt += f"buffer_load_dwordx4 {v(PIN+4*n,4)}, {v(vD)}, {s(SRD,4)}, {s(sT4)} offen sc1"
            loads.append(txt)
        prev = 0
        for c in range(NROLL, 16):
            first = [] if c == NROLL else [loads.pop(0) for _ in range(min(4, len(loads)))]
            second = [loads.pop(0) for _ in range(min(2, len(loads)))]
            trip(first, dodma=(c + 2 < 16), younger=prev, late=second)
            prev = len(second)
            self.stampw(f"a{c+1}e")
        attn.attn_tail(a, R, "fast")
        self.stamp("attn")
        self.p2_finish(first=True)
        a.label("Lo_done")
        a(f"s_cmp_lg_u32 {s(sWave)}, 0\ns_cbranch_scc1 Lf2")
        self.flag_store(F2, sId, 128, 132)
        a.label("Lf2")
        if OPT["rb"]:
            a(f"v_lshlrev_b32 v132, 4, {v(lane)}\nv_lshlrev_b32 v133, 2, {v(lane)}\n" + self.rb(132, sJd) + "\n" + self.rb(133, sJs))
        self.stamp("f2")
        for n in ("vK", "vR", "vV", "vDma", "vM", "vT0"): del R.names[n]
        R.free("Qr", "Qm", "SA", "SB", "O", "Km", "V", "KR", "gW", "gC")
        R.alloc("PINW", 80, at=PIN + 40)

    def p2_finish(self, first):
        a, R = self.a, self.R
        lane = R["lane"]; O = R["O"]; SA = R["SA"]; u = 132
        sfx = "a" if first else "b"
        a(f"s_mul_i32 {s(sT0)}, {s(sWave)}, 3072\ns_add_u32 {s(sT0)}, {s(sT0)}, {L_OX}\nv_lshl_add_u32 {v(u)}, {v(lane)}, 4, {s(sT0)}")
        a(f"s_xor_b32 {s(sT1)}, {s(sWave)}, 2\ns_mul_i32 {s(sT1)}, {s(sT1)}, 3072\ns_add_u32 {s(sT1)}, {s(sT1)}, {L_OX}\nv_lshl_add_u32 {v(u+1)}, {v(lane)}, 4, {s(sT1)}")
        a(f"s_nop 6\ns_cmp_lg_u32 {s(S_AT['sKH'])}, 0\ns_cbranch_scc1 Lox1{sfx}")
        for i in range(3): a(f"ds_write_b128 {v(u)}, {v(O+16+4*i,4)} offset:{i*1024}")
        a(f"s_branch Lox2{sfx}")
        a.label(f"Lox1{sfx}")
        for i in range(3): a(f"ds_write_b128 {v(u)}, {v(O+4*i,4)} offset:{i*1024}")
        for i in range(12): a(f"v_mov_b32 {v(O+i)}, {v(O+16+i)}")
        a.label(f"Lox2{sfx}")
        a("s_waitcnt lgkmcnt(0)\ns_barrier")
        for i in range(3): a(f"ds_read_b128 {v(SA+4*i,4)}, {v(u+1)} offset:{i*1024}")
        a(f"s_and_b32 {s(sT0)}, {s(sWave)}, 1\ns_lshl_b32 {s(sT0)}, {s(sT0)}, 1\ns_add_u32 {s(sT0)}, {s(sT0)}, {s(S_AT['sKH'])}\ns_lshl_b32 {s(sT1)}, {s(sTb)}, 2\ns_add_u32 {s(sT0)}, {s(sT0)}, {s(sT1)}")
        a(f"s_mul_i32 {s(sT0)}, {s(sT0)}, 40960\ns_add_u32 {s(sT0)}, {s(sT0)}, {OF:#x}")
        a(f"s_lshr_b32 {s(sT1)}, {s(sWave)}, 2\ns_lshl_b32 {s(sT2)}, {s(sM)}, 1\ns_add_u32 {s(sT1)}, {s(sT1)}, {s(sT2)}")
        a(f"s_lshl_b32 {s(sT2)}, {s(sT1)}, 10\ns_add_u32 {s(sT2)}, {s(sT2)}, {s(sT0)}\ns_lshl_b32 {s(sT1)}, {s(sT1)}, 8\ns_add_u32 {s(sT1)}, {s(sT1)}, {s(sT0)}\ns_add_u32 {s(sT1)}, {s(sT1)}, 32768")
        a(f"s_mov_b32 {s(sJd)}, {s(sT2)}\ns_mov_b32 {s(sJs)}, {s(sT1)}\ns_waitcnt lgkmcnt(0)")
        for i in range(12): a(f"v_add_f32 {v(O+i)}, {v(O+i)}, {v(SA+i)}")
        l = SA + 12
        a(f"v_mov_b32 {v(l)}, {v(O+8)}\nv_mov_b32 {v(l+1)}, {v(O+8)}\ns_nop 1\nv_permlane32_swap_b32 {v(l)}, {v(l+1)}")
        a(f"v_rcp_f32 {v(l)}, {v(l+1)}\ns_nop 0")
        for i in range(12): a(f"v_mul_f32 {v(O+i)}, {v(O+i)}, {v(l)}")
        for j in range(6): a(f"v_cvt_pk_bf16_f32 {v(SA+j)}, {v(O+2*j)}, {v(O+2*j+1)}")
        a(f"v_lshlrev_b32 {v(u)}, 4, {v(lane)}\nv_lshlrev_b32 {v(u+1)}, 3, {v(lane)}")
        a(f"buffer_store_dwordx4 {v(SA,4)}, {v(u)}, {s(SRD,4)}, {s(sT2)} offen sc1")
        a(f"s_mov_b32 exec_hi, 0\nbuffer_store_dwordx2 {v(SA+4,2)}, {v(u+1)}, {s(SRD,4)}, {s(sT1)} offen sc1\ns_mov_b32 exec_hi, -1")
        if first:
            for i in range(1, 12): a(f"v_add_f32 {v(O)}, {v(O)}, {v(O+i)}")
            a(f"v_mov_b32 {v(u)}, 0x5f800000\nv_cmp_nle_f32 vcc, {v(l+1)}, {v(u)}\nv_mov_b32 {v(u)}, 0x1f800000\nv_cmp_nge_f32 s[40:41], {v(l+1)}, {v(u)}\ns_or_b64 vcc, vcc, s[40:41]")
            a(f"v_mov_b32 {v(u)}, 0x207\nv_cmp_class_f32 s[40:41], {v(O)}, {v(u)}\ns_or_b64 vcc, vcc, s[40:41]\ns_cbranch_vccz Lokay")
            a(f"v_mov_b32 {v(u)}, 1\nv_mov_b32 {v(u+1)}, {L_BAD}\nds_write_b32 {v(u+1)}, {v(u)}")
            a.label("Lokay")
            a(f"s_waitcnt vmcnt(0) lgkmcnt(0)\ns_barrier\nv_mov_b32 {v(u+1)}, {L_BAD}\nds_read_b32 {v(u)}, {v(u+1)}\ns_waitcnt lgkmcnt(0)\nv_readfirstlane_b32 {s(sT0)}, {v(u)}")
            a(f"s_cmp_lg_u32 {s(sT0)}, 0\ns_cbranch_scc1 Lslow")
        else:
            a("s_waitcnt vmcnt(0)\ns_barrier\ns_branch Lo_done")

    def slow_path(self, regs):
        a, R = self.a, self.R
        old = dict(R.names); R.names.update(regs)
        S = S_AT; vM = R["vM"]; lane = R["lane"]
        a.label("Lslow")
        for mode in ("max", "sub"):
            attn.attn_setup(a, R, S, L_BIG)
            a(attn.dma_chunk(R, S, SRD)); a(attn.dma_chunk(R, S, SRD))
            if mode == "max": a(f"v_mov_b32 {v(vM)}, 0xff7fffff\nv_mov_b32 {v(vM+1)}, 0xff7fffff")
            a("s_waitcnt vmcnt(3)\ns_barrier")
            attn.attn_head(a, R)
            attn.attn_loop(a, R, S, SRD, mode, 16)
            attn.attn_tail(a, R, mode)
            a("s_waitcnt vmcnt(0)")
            if mode == "max":
                u = 132
                a(f"v_mov_b32 {v(u)}, {v(vM)}\nv_mov_b32 {v(u+1)}, {v(vM+1)}\ns_nop 1\nv_permlane32_swap_b32 {v(u)}, {v(vM)}\nv_permlane32_swap_b32 {v(u+1)}, {v(vM+1)}")
                a(f"v_max_f32 {v(vM)}, {v(vM)}, {v(u)}\nv_max_f32 {v(vM+1)}, {v(vM+1)}, {v(u+1)}")
                a(f"s_lshl_b32 {s(sT0)}, {s(sWave)}, 9\ns_add_u32 {s(sT0)}, {s(sT0)}, {L_OX}\nv_lshl_add_u32 {v(u)}, {v(lane)}, 3, {s(sT0)}")
                a(f"ds_write_b64 {v(u)}, {v(vM,2)}\nv_xor_b32 {v(u)}, 1024, {v(u)}\ns_waitcnt lgkmcnt(0)\ns_barrier")
                a(f"ds_read_b64 {v(u,2)}, {v(u)}\ns_waitcnt lgkmcnt(0)\nv_max_f32 {v(vM)}, {v(vM)}, {v(u)}\nv_max_f32 {v(vM+1)}, {v(vM+1)}, {v(u+1)}")
                a("s_barrier")
        self.p2_finish(first=False)
        R.names.clear(); R.names.update(old)

    def tok_addr(self, dst, base, ttstride, qblocks, rem=None):
        a, R = self.a, self.R; lane = R["lane"]; t = R["t"]
        a(f"v_lshrrev_b32 {v(t)}, 5, {v(lane)}\nv_lshlrev_b32 {v(t)}, 10, {v(t)}\nv_bfe_u32 {v(t+1)}, {v(lane)}, 4, 1\nv_and_b32 {v(t+2)}, 15, {v(lane)}")
        if rem is not None:
            a(f"v_lshl_add_u32 {v(t+3)}, {v(t+1)}, 8, {v(t)}\nv_lshl_add_u32 {v(t+3)}, {v(t+2)}, 3, {v(t+3)}")
        a(f"v_lshl_add_u32 {v(t)}, {v(t+1)}, 9, {v(t)}\nv_lshl_add_u32 {v(t)}, {v(t+2)}, 4, {v(t)}")
        a(f"s_and_b32 {s(sT0)}, {s(sWave)}, 3\ns_mul_i32 {s(sT1)}, {s(sT0)}, {qblocks*1024}\ns_add_u32 {s(sT1)}, {s(sT1)}, {base}")
        for i in range(4):
            a(f"s_add_u32 {s(sT2)}, {s(sT0)}, {i}\ns_bfe_u32 {s(sT3)}, {s(sT2)}, 0x10001\ns_mul_i32 {s(sT3)}, {s(sT3)}, {ttstride}\ns_add_u32 {s(sT3)}, {s(sT3)}, {s(sT1)}\ns_and_b32 {s(sT2)}, {s(sT2)}, 1")
            a(f"s_lshl_b32 {s(sT4)}, {s(sT2)}, 8\ns_add_u32 {s(sT4)}, {s(sT4)}, {s(sT3)}\nv_add_u32 {v(dst+i)}, {s(sT4)}, {v(t)}")
            if rem is not None:
                a(f"s_lshl_b32 {s(sT4)}, {s(sT2)}, 7\ns_add_u32 {s(sT4)}, {s(sT4)}, {s(sT3)}\ns_add_u32 {s(sT4)}, {s(sT4)}, 32768\nv_add_u32 {v(rem+i)}, {s(sT4)}, {v(t+3)}")
    def reduce4(self, fp, ACC, tmp, va):
        a, R = self.a, self.R; lane = R["lane"]; nf = 3 - fp
        a(f"s_and_b32 {s(sT0)}, {s(sWave)}, 3")
        for i in range(4):
            slot = (3 - i) if i else 0
            a(f"s_add_u32 {s(sT1)}, {s(sT0)}, {i}\ns_and_b32 {s(sT1)}, {s(sT1)}, 3\ns_mul_i32 {s(sT1)}, {s(sT1)}, 3072\ns_add_u32 {s(sT1)}, {s(sT1)}, {L_PL + 3*fp*12288 + slot*1024}")
            a(f"v_lshl_add_u32 {v(va+i)}, {v(lane)}, 4, {s(sT1)}")
        for f in range(nf):
            for i in range(1, 4): a(f"ds_write_b128 {v(va+i)}, {v(ACC+(f*4+i)*4,4)} offset:{f*12288}")
        a("s_waitcnt lgkmcnt(0)\ns_barrier")
        for f in range(nf):
            for k in range(3): a(f"ds_read_b128 {v(tmp+(f*3+k)*4,4)}, {v(va)} offset:{f*12288 + k*1024}")
        for f in range(nf):
            a(f"s_waitcnt lgkmcnt({3*(nf-1-f)})")
            for j in range(4):
                d = ACC + f * 16 + j; x = tmp + f * 12 + j
                a(f"v_add_f32 {v(x)}, {v(x)}, {v(x+4)}\nv_add_f32 {v(d)}, {v(d)}, {v(x+8)}\nv_add_f32 {v(d)}, {v(d)}, {v(x)}")
    def row_col(self, dst, ptrcol):
        a, R = self.a, self.R; lane = R["lane"]; t = R["t"]
        a(f"s_lshl_b32 {s(sT0)}, {s(sTb)}, 7\ns_lshr_b32 {s(sT1)}, {s(sM)}, 3\ns_lshl_b32 {s(sT1)}, {s(sT1)}, 6\ns_add_u32 {s(sT0)}, {s(sT0)}, {s(sT1)}")
        a(f"s_and_b32 {s(sT1)}, {s(sWave)}, 3\ns_lshl_b32 {s(sT1)}, {s(sT1)}, 4\ns_add_u32 {s(sT0)}, {s(sT0)}, {s(sT1)}\ns_mul_i32 {s(sT0)}, {s(sT0)}, 1280")
        a(f"s_and_b32 {s(sT1)}, {s(sM)}, 7\ns_mul_i32 {s(sT1)}, {s(sT1)}, 160\ns_add_u32 {s(sT0)}, {s(sT0)}, {s(sT1)}\ns_lshr_b32 {s(sT1)}, {s(sWave)}, 2\ns_mul_i32 {s(sT1)}, {s(sT1)}, 96\ns_add_u32 {s(sT0)}, {s(sT0)}, {s(sT1)}")
        a(f"v_and_b32 {v(t)}, 15, {v(lane)}\nv_mul_u32_u24 {v(t)}, 1280, {v(t)}\nv_lshrrev_b32 {v(t+1)}, 4, {v(lane)}\nv_lshl_add_u32 {v(t)}, {v(t+1)}, 3, {v(t)}\nv_add_u32 {v(dst)}, {s(sT0)}, {v(t)}")

    def p3(self):
        a, R = self.a, self.R
        t, lane = R["t"], R["lane"]
        X1 = R.alloc("X1", 6, at=10)
        ACC = R.alloc("ACC", 48, at=16); TOK = R.alloc("TOK", 32, at=64); PT = R.alloc("PT", 20, at=96)
        vT = R.alloc("vT", 4, at=116); vRm = R.alloc("vRm", 4, at=120); vD = R.alloc("vD", at=135); vA = R.alloc("vA", at=125)
        a.c("window: tables, residual")
        a(f"s_mov_b32 {s(sTb)}, {s(sTbB)}\ns_mov_b32 {s(sM)}, {s(sMB)}\ns_lshl_b32 {s(sId)}, {s(sTb)}, 4\ns_add_u32 {s(sId)}, {s(sId)}, {s(sM)}")
        a(f"s_and_b32 {s(sT0)}, {s(sM)}, 7\ns_mul_i32 {s(sT0)}, {s(sT0)}, 320\ns_sub_u32 {s(sT1)}, {s(sT0)}, {320*16}\ns_add_u32 {s(sT2)}, {s(sT0)}, {7680-340*16}")
        a(f"v_mov_b32 {v(t)}, 2560\nv_mov_b32 {v(t+1)}, {s(sT1)}\nv_cmp_le_u32 vcc, 320, v0\nv_mov_b32 {v(t+2)}, {s(sT2)}\ns_nop 0\nv_cndmask_b32 {v(t)}, {v(t)}, {v(t+1)}, vcc")
        a(f"v_cmp_le_u32 vcc, 340, v0\ns_nop 1\nv_cndmask_b32 {v(t)}, {v(t)}, {v(t+2)}, vcc\nv_lshl_add_u32 {v(vA)}, v0, 4, {v(t)}")
        a(f"v_cmp_gt_u32 vcc, 360, v0\ns_and_saveexec_b64 {s(sEx,2)}, vcc\ns_cbranch_execz Lt1")
        a(f"s_mov_b32 {s(sT0)}, {MP2:#x}")
        for i in range(5):
            a(f"buffer_load_dwordx4 {v(PT+4*i,4)}, {v(vA)}, {s(SRD,4)}, {s(sT0)} offen sc1")
            if i < 4: a(f"s_add_u32 {s(sT0)}, {s(sT0)}, 10240")
        a.label("Lt1")
        a(f"s_mov_b64 exec, {s(sEx,2)}")
        a(f"v_lshlrev_b32 {v(vD)}, 4, {v(lane)}")
        self.row_col(vA, None)
        a(f"s_cmp_ge_u32 {s(sWave)}, 4\ns_cbranch_scc1 Lx3\nglobal_load_dwordx2 {v(X1+4,2)}, {v(vA)}, {s(P_X,2)} offset:64")
        a.label("Lx3")
        for f in range(2): a(f"global_load_dwordx2 {v(X1+2*f,2)}, {v(vA)}, {s(P_X,2)} offset:{f*32}")
        self.tok_addr(vT, L_BIG, 40960, 2, rem=vRm)
        a(f"s_cmp_lg_u32 {s(sWave)}, 7\ns_cbranch_scc1 Lq4")
        self.poll16(F2, "row", "2")
        a.label("Lq4")
        a("s_barrier")
        self.stamp("f2seen")
        a(f"s_lshl_b32 {s(sT0)}, {s(sTb)}, 1\ns_lshr_b32 {s(sT1)}, {s(sM)}, 3\ns_add_u32 {s(sT0)}, {s(sT0)}, {s(sT1)}\ns_mul_i32 {s(sT0)}, {s(sT0)}, 81920\ns_add_u32 {s(sT0)}, {s(sT0)}, {OF:#x}")
        a(f"s_mul_i32 {s(sT1)}, {s(sWave)}, 10240\ns_add_u32 {s(sT0)}, {s(sT0)}, {s(sT1)}\ns_add_u32 m0, {s(sT1)}, {L_BIG}\ns_nop 0")
        for i in range(10):
            if i and i % 4 == 0: a(f"s_add_u32 {s(sT0)}, {s(sT0)}, 4096\ns_add_u32 m0, m0, 4096\ns_nop 0")
            a(f"buffer_load_dwordx4 {v(vD)}, {s(SRD,4)}, {s(sT0)} offen offset:{(i%4)*1024} sc1 lds")
        a(f"v_cmp_gt_u32 vcc, 360, v0\ns_and_saveexec_b64 {s(sEx,2)}, vcc\ns_cbranch_execz Lt2")
        a("s_waitcnt vmcnt(12)")
        for j in range(4):
            a(f"v_add_f32 {v(PT+j)}, {v(PT+j)}, {v(PT+4+j)}\nv_add_f32 {v(PT+8+j)}, {v(PT+8+j)}, {v(PT+12+j)}")
            a(f"v_add_f32 {v(PT+j)}, {v(PT+j)}, {v(PT+16+j)}\nv_add_f32 {v(PT+j)}, {v(PT+j)}, {v(PT+8+j)}")
        a(f"v_subrev_u32 {v(t+3)}, 160, v0\nv_cmp_gt_u32 vcc, 160, {v(t+3)}\nv_mov_b32 {v(t+2)}, 1.0\ns_nop 0\nv_cndmask_b32 {v(t+2)}, 0, {v(t+2)}, vcc")
        for j in (0, 2):
            o = PT + 4 + (j >> 1)
            a(f"v_cvt_pk_bf16_f32 {v(t)}, {v(PT+j)}, {v(PT+j+1)}\nv_lshlrev_b32 {v(PT+j)}, 16, {v(t)}\nv_and_b32 {v(PT+j+1)}, 0xffff0000, {v(t)}")
            a(f"v_add_f32 {v(PT+j)}, {v(PT+j)}, {v(t+2)}\nv_add_f32 {v(PT+j+1)}, {v(PT+j+1)}, {v(t+2)}")
            a(f"v_cvt_pk_bf16_f32 {v(o)}, {v(PT+j)}, {v(PT+j+1)}\nv_lshlrev_b32 {v(PT+j)}, 16, {v(o)}\nv_and_b32 {v(PT+j+1)}, 0xffff0000, {v(o)}")
        a(f"v_cndmask_b32 {v(t)}, v0, {v(t+3)}, vcc\nv_mov_b32 {v(t+1)}, {L_SB}\nv_cndmask_b32 {v(t+1)}, {v(t+1)}, {L_GB}, vcc".replace(f"v_cndmask_b32 {v(t+1)}, {v(t+1)}, {L_GB}, vcc", f"v_cndmask_b32 {v(t+1)}, {v(t+1)}, 0, vcc"))
        a(f"v_lshrrev_b32 {v(t+2)}, 2, {v(t)}\nv_lshl_add_u32 {v(t+1)}, {v(t+2)}, 5, {v(t+1)}\nv_and_b32 {v(t+2)}, 1, {v(t)}\nv_lshl_add_u32 {v(t+1)}, {v(t+2)}, 4, {v(t+1)}")
        a(f"v_bfe_u32 {v(t+2)}, {v(t)}, 1, 1\nv_lshl_add_u32 {v(t+1)}, {v(t+2)}, 3, {v(t+1)}")
        a(f"s_mov_b64 s[40:41], exec\nv_cmp_gt_u32 vcc, 320, v0\ns_and_b64 exec, exec, vcc\ns_cbranch_execz Lt3\nds_write_b64 {v(t+1)}, {v(PT+4,2)}")
        a.label("Lt3")
        a(f"s_andn2_b64 exec, s[40:41], vcc\ns_cbranch_execz Lt2")
        a(f"v_lshlrev_b32 {v(t)}, 4, v0\nv_add_u32 {v(t)}, {L_TA - 320*16}, {v(t)}\nds_write_b128 {v(t)}, {v(PT,4)}")
        a.label("Lt2")
        a(f"s_mov_b64 exec, {s(sEx,2)}")
        a("s_waitcnt vmcnt(0) lgkmcnt(0)\ns_barrier")
        self.stamp("oin")
        a(f"s_cmp_ge_u32 {s(sWave)}, 4\ns_cbranch_scc1 Lp3b")
        for fp in range(2):
            if fp: a.label("Lp3b")
            nf = 3 - fp
            sc = Sched()
            def ldT(i5):
                b = TOK + 16 * (i5 & 1)
                for i in range(4):
                    if i5 < 4: sc.lds(f"ds_read_b128 {v(b+4*i,4)}, {v(vT+i)} offset:{i5*8192}", f"T{i5}_{i}")
                    else: sc.lds(f"ds_read2_b64 {v(b+4*i,4)}, {v(vRm+i)} offset0:0 offset1:64", f"T{i5}_{i}")
            ldT(0)
            for i5 in range(5):
                if i5 < 4: ldT(i5 + 1)
                for i in range(4):
                    for f in range(nf):
                        d = ACC + (f * 4 + i) * 4
                        sc.use(f"v_mfma_f32_16x16x32_bf16 {v(d,4)}, {v(PIN+4*(i5*nf+f),4)}, {v(TOK+16*(i5&1)+4*i,4)}, {'0' if i5 == 0 else v(d,4)}", [f"T{i5}_{i}"])
            sc.render(a, loop=False)
            a(f"s_cmp_ge_u32 s2, 108\ns_cbranch_scc1 Lu1{fp}")
            a(f"s_mul_i32 {s(sT0)}, s2, 40\ns_mul_i32 {s(sT1)}, {s(sWave)}, 5\ns_add_u32 {s(sT0)}, {s(sT0)}, {s(sT1)}\ns_lshl_b32 {s(sT0)}, {s(sT0)}, 10\ns_add_u32 {s(sT0)}, {s(sT0)}, {WGF:#x}")
            for i in range(4): a(f"buffer_load_dwordx4 {v(PIN+4*i,4)}, {v(vD)}, {s(SRD,4)}, {s(sT0)} offen offset:{i*1024} sc1")
            a(f"s_add_u32 {s(sT0)}, {s(sT0)}, 4096\nbuffer_load_dwordx4 {v(PIN+16,4)}, {v(vD)}, {s(SRD,4)}, {s(sT0)} offen sc1")
            a.label(f"Lu1{fp}")
            a("s_nop 4")
            if fp == 0: self.stampw("p3m")
            self.reduce4(fp, ACC, TOK, vT)
            if fp == 0: self.stampw("p3r")
            GA = TOK; G2 = TOK + 12; S1, S2 = PT, PT + 1; XO = PT + 4
            a(f"v_lshrrev_b32 {v(t)}, 4, {v(lane)}\nv_lshlrev_b32 {v(t+1)}, 4, {v(t)}")
            for f in range(nf): a(f"ds_read_b128 {v(GA+4*f,4)}, {v(t+1)} offset:{L_TA + (3*fp+f)*64}")
            a(f"s_and_b32 {s(sT0)}, {s(sM)}, 7\ns_mul_i32 {s(sT0)}, {s(sT0)}, 160\nv_and_b32 {v(t+1)}, 1, {v(t)}\nv_lshl_add_u32 {v(t+1)}, {v(t+1)}, 4, {s(sT0)}\nv_lshrrev_b32 {v(t)}, 1, {v(t)}\nv_lshl_add_u32 {v(t+1)}, {v(t)}, 3, {v(t+1)}")
            for f in range(nf): a(f"ds_read_b64 {v(G2+2*f,2)}, {v(t+1)} offset:{L_GB + (3*fp+f)*32}")
            a(f"v_mov_b32 {v(S1)}, 0\nv_mov_b32 {v(S2)}, 0\ns_waitcnt lgkmcnt(0)")
            for f in range(nf):
                d = ACC + 16 * f
                for j in range(2):
                    x = X1 + 2 * f + j; g = G2 + 2 * f + j
                    a(f"v_lshlrev_b32 {v(t)}, 16, {v(x)}\nv_and_b32 {v(t+1)}, 0xffff0000, {v(x)}")
                    a(f"v_fmac_f32 {v(t)}, {v(GA+4*f+2*j)}, {v(d+2*j)}\nv_fmac_f32 {v(t+1)}, {v(GA+4*f+2*j+1)}, {v(d+2*j+1)}\nv_cvt_pk_bf16_f32 {v(x)}, {v(t)}, {v(t+1)}")
                    a(f"v_lshlrev_b32 {v(t)}, 16, {v(x)}\nv_and_b32 {v(t+1)}, 0xffff0000, {v(x)}\nv_lshlrev_b32 {v(t+2)}, 16, {v(g)}\nv_and_b32 {v(t+3)}, 0xffff0000, {v(g)}")
                    a(f"v_add_f32 {v(S1)}, {v(S1)}, {v(t)}\nv_fmac_f32 {v(S2)}, {v(t)}, {v(t)}\nv_add_f32 {v(S1)}, {v(S1)}, {v(t+1)}\nv_fmac_f32 {v(S2)}, {v(t+1)}, {v(t+1)}")
                    a(f"v_mul_f32 {v(t)}, {v(t)}, {v(t+2)}\nv_mul_f32 {v(t+1)}, {v(t+1)}, {v(t+3)}")
                    a(f"v_cvt_pk_bf16_f32 {v(XO+2*f+j)}, {v(t)}, {v(t+1)}")
            a(f"s_lshl_b32 {s(sT0)}, {s(sTb)}, 2\ns_lshr_b32 {s(sT1)}, {s(sM)}, 3\ns_lshl_b32 {s(sT1)}, {s(sT1)}, 1\ns_add_u32 {s(sT0)}, {s(sT0)}, {s(sT1)}\ns_bfe_u32 {s(sT1)}, {s(sWave)}, 0x10001\ns_add_u32 {s(sT2)}, {s(sT0)}, {s(sT1)}")
            a(f"s_mul_i32 {s(sT0)}, {s(sT2)}, 40\ns_and_b32 {s(sT3)}, {s(sM)}, 7\ns_mul_i32 {s(sT1)}, {s(sT3)}, 5\ns_add_u32 {s(sT0)}, {s(sT0)}, {s(sT1)}\ns_lshl_b32 {s(sT0)}, {s(sT0)}, 10\ns_add_u32 {s(sT0)}, {s(sT0)}, {XG + 3*fp*1024:#x}")
            a(f"s_and_b32 {s(sT1)}, {s(sWave)}, 1\ns_lshl_b32 {s(sT4)}, {s(sT1)}, 8\ns_add_u32 {s(sT0)}, {s(sT0)}, {s(sT4)}")
            a(f"v_and_b32 {v(t)}, 15, {v(lane)}\nv_lshlrev_b32 {v(t)}, 4, {v(t)}\nv_bfe_u32 {v(t+1)}, {v(lane)}, 4, 1\nv_lshl_add_u32 {v(t)}, {v(t+1)}, 9, {v(t)}\nv_lshrrev_b32 {v(t+1)}, 5, {v(lane)}\nv_lshl_add_u32 {v(t)}, {v(t+1)}, 10, {v(t)}")
            a(f"v_mov_b32 {v(vA)}, {v(t)}\ns_mov_b32 {s(sJd)}, {s(sT0)}\ns_add_u32 {s(sJs)}, {s(sT0)}, {1024 * (1 - fp)}")
            a(f"v_permlane32_swap_b32 {v(XO)}, {v(XO+2)}\nv_permlane32_swap_b32 {v(XO+1)}, {v(XO+3)}")
            a(f"buffer_store_dwordx4 {v(XO,4)}, {v(t)}, {s(SRD,4)}, {s(sT0)} offen sc1")
            if fp == 0:
                a(f"v_permlane32_swap_b32 {v(XO+4)}, {v(XO+6)}\nv_permlane32_swap_b32 {v(XO+5)}, {v(XO+7)}")
                a(f"s_mov_b32 exec_hi, 0\nbuffer_store_dwordx4 {v(XO+4,4)}, {v(t)}, {s(SRD,4)}, {s(sT0)} offen offset:2048 sc1\ns_mov_b32 exec_hi, -1")
            a(f"v_mov_b32 {v(PT+2)}, {v(S1)}\nv_mov_b32 {v(PT+3)}, {v(S2)}\ns_nop 1\nv_permlane32_swap_b32 {v(S1)}, {v(PT+2)}\nv_permlane32_swap_b32 {v(S2)}, {v(PT+3)}")
            a(f"v_add_f32 {v(S1)}, {v(S1)}, {v(PT+2)}\nv_add_f32 {v(S2)}, {v(S2)}, {v(PT+3)}\nv_mov_b32 {v(PT+2)}, {v(S1)}\nv_mov_b32 {v(PT+3)}, {v(S2)}\ns_nop 1")
            a(f"v_permlane16_swap_b32 {v(S1)}, {v(PT+2)}\nv_permlane16_swap_b32 {v(S2)}, {v(PT+3)}\nv_add_f32 {v(S1)}, {v(S1)}, {v(PT+2)}\nv_add_f32 {v(S2)}, {v(S2)}, {v(PT+3)}")
            a(f"s_lshl_b32 {s(sT2)}, {s(sT2)}, 12\ns_lshl_b32 {s(sT3)}, {s(sT3)}, 9\ns_add_u32 {s(sT2)}, {s(sT2)}, {s(sT3)}\ns_lshl_b32 {s(sT1)}, {s(sT1)}, 7\ns_add_u32 {s(sT2)}, {s(sT2)}, {s(sT1)}\ns_add_u32 {s(sT2)}, {s(sT2)}, {ST + fp*256:#x}")
            a(f"v_lshlrev_b32 {v(t)}, 3, {v(lane)}\ns_mov_b64 exec, 0xffff\nbuffer_store_dwordx2 {v(S1,2)}, {v(t)}, {s(SRD,4)}, {s(sT2)} offen sc1\ns_mov_b64 exec, -1")
            if fp == 0: a("s_branch Lp3e")
        a.label("Lp3e")
        self.stamp("p3e")
        a("s_waitcnt vmcnt(0)\ns_barrier")
        a(f"s_cmp_lg_u32 {s(sWave)}, 0\ns_cbranch_scc1 Lf3")
        self.flag_store(F3, sId, 128, t)
        a.label("Lf3")
        a(self.rb(vA, sJd) + "\n" + self.rb(vA, sJs))
        self.stamp("f3")
        R.free("ACC", "TOK", "PT", "vT", "vRm", "vA")

    def sj2(self):
        a, R = self.a, self.R
        t, lane, vD = R["t"], R["lane"], R["vD"]
        ACC = 16; UF = PIN; TOK = 64
        a(f"s_cmp_ge_u32 s2, 108\ns_cbranch_scc1 Lu2")
        a(f"v_and_b32 {v(t)}, 31, {v(lane)}\nv_lshrrev_b32 {v(t+1)}, 5, {v(lane)}\ns_mul_i32 {s(sT0)}, {s(sWave)}, 160\nv_lshl_add_u32 {v(t+1)}, {v(t+1)}, 4, {s(sT0)}")
        a(f"v_mul_u32_u24 {v(t+2)}, {L_SB}, {v(t)}\nv_add_u32 {v(t+1)}, {v(t+1)}, {v(t+2)}\nv_cmp_gt_u32 vcc, 2, {v(t)}")
        for i in range(20): a(f"v_mov_b32 {v(TOK+i)}, 0")
        a(f"s_and_saveexec_b64 {s(sEx,2)}, vcc")
        for i in range(5): a(f"ds_read_b128 {v(TOK+4*i,4)}, {v(t+1)} offset:{32*i}")
        a(f"s_mov_b64 exec, {s(sEx,2)}\ns_waitcnt lgkmcnt(0)")
        D = ACC + 24
        for i in range(5): a(f"v_mfma_f32_32x32x16_bf16 {v(D,16)}, {v(UF+4*i,4)}, {v(TOK+4*i,4)}, {'0' if i == 0 else v(D,16)}")
        a(f"s_lshl_b32 {s(sT0)}, {s(sWave)}, 8\ns_add_u32 {s(sT0)}, {s(sT0)}, {L_X}\nv_lshl_add_u32 {v(t+1)}, {v(t)}, 7, {s(sT0)}\nv_lshrrev_b32 {v(t+2)}, 5, {v(lane)}\nv_lshl_add_u32 {v(t+1)}, {v(t+2)}, 4, {v(t+1)}")
        a(f"s_nop 6\ns_and_saveexec_b64 {s(sEx,2)}, vcc")
        for g in range(4): a(f"ds_write_b128 {v(t+1)}, {v(D+4*g,4)} offset:{32*g}")
        a(f"s_mov_b64 exec, {s(sEx,2)}")
        self.last_arriver(L_BAD + 12, 8, "Lu2")
        a(f"v_lshlrev_b32 {v(t)}, 2, {v(lane)}\nv_add_u32 {v(t)}, {L_X}, {v(t)}")
        for i in range(4): a(f"ds_read2st64_b32 {v(D+2*i,2)}, {v(t)} offset0:{2*i} offset1:{2*i+1}")
        a("s_waitcnt lgkmcnt(0)")
        for j in (4, 2, 1):
            for i in range(j): a(f"v_add_f32 {v(D+i)}, {v(D+i)}, {v(D+i+j)}")
        a(f"v_mov_b32 {v(D+1)}, {v(D)}\ns_nop 1\nv_permlane32_swap_b32 {v(D)}, {v(D+1)}")
        for j in range(2):
            x = D + j; hi = D + 2 + j; lo = D + 4 + j
            a(f"v_cvt_pk_bf16_f32 {v(hi)}, {v(x)}, {v(x)}\nv_and_b32 {v(hi)}, 0xffff0000, {v(hi)}\nv_sub_f32 {v(lo)}, {v(x)}, {v(hi)}")
        o = D + 8
        a(f"v_cvt_pk_bf16_f32 {v(o)}, {v(D+2)}, {v(D+4)}\nv_cvt_pk_bf16_f32 {v(o+1)}, {v(D+2)}, {v(D+3)}\nv_cvt_pk_bf16_f32 {v(o+2)}, {v(D+5)}, {v(D+3)}\nv_mov_b32 {v(o+3)}, 0")
        a("s_mov_b32 exec_lo, 0")
        for j in range(3): a(f"v_mov_b32 {v(o+j)}, 0")
        a(f"s_mov_b32 exec_lo, -1\ns_lshl_b32 {s(sT0)}, s2, 10\ns_add_u32 {s(sT0)}, {s(sT0)}, {UVF:#x}")
        a(f"buffer_store_dwordx4 {v(o,4)}, {v(vD)}, {s(SRD,4)}, {s(sT0)} offen sc1\ns_waitcnt vmcnt(0)")
        self.flag_store(FU, 2, 128, t)
        a.label("Lu2")

    def p4_tile_dma(self, j):
        a, R = self.a, self.R; vD = R["vD"]
        a(f"s_mul_i32 {s(sT0)}, {s(sM)}, 40\ns_mul_i32 {s(sT1)}, {s(sWave)}, 5\ns_add_u32 {s(sT0)}, {s(sT0)}, {s(sT1)}\ns_lshl_b32 {s(sT0)}, {s(sT0)}, 10\ns_add_u32 {s(sT0)}, {s(sT0)}, {WGF + j*16*40960:#x}")
        a(f"s_lshl_b32 {s(sT1)}, {s(sT1)}, 10\ns_add_u32 m0, {s(sT1)}, {L_BIG + (j%3)*40960}\ns_nop 0")
        for i in range(4): a(f"buffer_load_dwordx4 {v(vD)}, {s(SRD,4)}, {s(sT0)} offen offset:{i*1024} sc1 lds")
        a(f"s_add_u32 {s(sT0)}, {s(sT0)}, 4096\ns_add_u32 m0, m0, 4096\ns_nop 0\nbuffer_load_dwordx4 {v(vD)}, {s(SRD,4)}, {s(sT0)} offen sc1 lds")

    def p4_tile_dma2(self, j):
        vD = self.R["vD"]; out = []
        for i in range(10):
            o = ""
            if i == 0:
                o += f"s_mul_i32 {s(sT2)}, {s(sM)}, 40\ns_and_b32 {s(sT1)}, {s(sWave)}, 3\ns_mul_i32 {s(sT1)}, {s(sT1)}, 10\ns_add_u32 {s(sT2)}, {s(sT2)}, {s(sT1)}\ns_lshl_b32 {s(sT2)}, {s(sT2)}, 10\ns_add_u32 {s(sT2)}, {s(sT2)}, {WGF + j*16*40960:#x}\n"
                o += f"s_lshl_b32 {s(sT1)}, {s(sT1)}, 10\ns_add_u32 m0, {s(sT1)}, {L_BIG + (j%3)*40960}\ns_nop 0\n"
            elif i % 4 == 0:
                o += f"s_add_u32 {s(sT2)}, {s(sT2)}, 4096\ns_add_u32 m0, m0, 4096\ns_nop 0\n"
            out.append(o + f"buffer_load_dwordx4 {v(vD)}, {s(SRD,4)}, {s(sT2)} offen offset:{(i%4)*1024} sc1 lds")
        return out
    HSLOT = (60 * K, 92 * K, 124 * K, 20 * K)
    def hdma(self, sg, split=False, other=0):
        vD = self.R["vD"]
        o = f"s_add_u32 {s(sT2)}, {s(sJd)}, {(sg*16384 + other*108*1024) & 0xffffffff:#x}\ns_lshl_b32 {s(sT1)}, {s(sWave)}, 12\ns_add_u32 m0, {s(sT1)}, {self.HSLOT[sg&3] + other*16384}\ns_nop 0\n"
        l = [f"buffer_load_dwordx4 {v(vD)}, {s(SRD,4)}, {s(sT2)} offen offset:{i*1024} sc1 lds" for i in range(4)]
        l[0] = o + l[0]
        return l if split else "\n".join(l)
    def p5_pre(self):
        a = self.a
        for sg in (2, 3): a(self.hdma(sg)); a(self.hdma(sg, other=-1))
    def poll4(self, n, lab, wave):
        a = self.a
        a(f"s_cmp_lg_u32 {s(sWave)}, {wave}\ns_cbranch_scc1 Lq6{lab}")
        self.poll16(F4, "row", "4" + lab, minval=n)
        a.label(f"Lq6{lab}")
    def p4(self):
        a, R = self.a, self.R
        t, lane, vD = R["t"], R["lane"], R["vD"]
        XR = R.alloc("XR", 80, at=16); AC = R.alloc("AC", 32, at=96); WF = R.alloc("WF", 12, at=136); RC = R.alloc("RC", 16, at=148)
        UT = R.alloc("UT", 4, at=164); UW = R.alloc("UW", 4, at=168); vW, vX, rs, vS = t + 4, t + 5, t + 6, t + 7
        E = R.alloc("E", 4, at=128); HO = R.alloc("HO", 4, at=172)
        X2 = 140 * K - L_X
        self.sj2()
        self.stamp("sj2")
        for j in range(3): self.p4_tile_dma(j)
        a(f"s_and_b32 {s(sT0)}, {s(sWave)}, 3\ns_lshl_b32 {s(sT1)}, {s(sTb)}, 2\ns_add_u32 {s(sC_)}, {s(sT0)}, {s(sT1)}")
        a(f"v_and_b32 {v(vS)}, 31, {v(lane)}\nv_lshlrev_b32 {v(vS)}, 3, {v(vS)}\nv_lshrrev_b32 {v(t+1)}, 5, {v(lane)}\nv_lshl_add_u32 {v(vS)}, {v(t+1)}, 11, {v(vS)}")
        a(f"s_lshr_b32 {s(sT1)}, {s(sWave)}, 2\ns_mul_i32 {s(sT2)}, {s(sT1)}, 20480\ns_add_u32 {s(sT2)}, {s(sT2)}, {L_BIG}\nv_add_u32 {v(vW)}, {s(sT2)}, {v(vD)}")
        a(f"s_lshl_b32 {s(sT0)}, {s(sT0)}, 12\ns_add_u32 {s(sT0)}, {s(sT0)}, {L_X}\nv_add_u32 {v(vX)}, {s(sT0)}, {v(vD)}")
        a(f"s_mul_i32 {s(sA)}, {s(sC_)}, 108\ns_add_u32 {s(sA)}, {s(sA)}, {s(sM)}\ns_lshl_b32 {s(sA)}, {s(sA)}, 10\ns_add_u32 {s(sA)}, {s(sA)}, {HF:#x}")
        a(f"s_lshl_b32 {s(sD)}, {s(sM)}, 10\ns_add_u32 {s(sD)}, {s(sD)}, {UVF:#x}")
        a(f"s_mul_i32 {s(sJs)}, {s(sC_)}, 40\ns_mul_i32 {s(sT2)}, {s(sT1)}, 20\ns_add_u32 {s(sJs)}, {s(sJs)}, {s(sT2)}\ns_lshl_b32 {s(sJs)}, {s(sJs)}, 10\ns_add_u32 {s(sJs)}, {s(sJs)}, {XG:#x}")
        a(f"s_lshl_b32 {s(sT0)}, {s(sTb)}, 2\ns_lshr_b32 {s(sT2)}, {s(sM)}, 3\ns_lshl_b32 {s(sT2)}, {s(sT2)}, 1\ns_add_u32 {s(sT0)}, {s(sT0)}, {s(sT2)}\ns_add_u32 {s(sT0)}, {s(sT0)}, {s(sT1)}")
        a(f"s_mul_i32 {s(sJd)}, {s(sT0)}, 108\ns_and_b32 {s(sT1)}, {s(sWave)}, 3\ns_lshl_b32 {s(sT1)}, {s(sT1)}, 2\ns_add_u32 {s(sJd)}, {s(sJd)}, {s(sT1)}\ns_lshl_b32 {s(sJd)}, {s(sJd)}, 10\ns_add_u32 {s(sJd)}, {s(sJd)}, {HF:#x}")
        k1 = 2 * 0.7978845608028654 * LOG2E
        a(f"s_mov_b32 {s(sT5)}, {f2u(-k1*0.044715):#x}\ns_mov_b32 {s(sG2)}, {f2u(-k1):#x}")
        a(f"s_and_b32 {s(sT1)}, {s(sM)}, 7\ns_mul_i32 {s(sT1)}, {s(sT1)}, 20480\ns_mul_i32 {s(sT2)}, {s(sTb)}, 163840\ns_add_u32 {s(sT1)}, {s(sT1)}, {s(sT2)}\ns_add_u32 {s(sJt)}, {s(sT1)}, {XG:#x}")
        a(f"v_lshlrev_b32 {v(E)}, 7, v0")
        a(f"s_cmp_lg_u32 {s(sWave)}, 0\ns_cbranch_scc1 Lq5")
        self.poll16(F3, "row", "3")
        a.label("Lq5")
        a("s_waitcnt vmcnt(5)\ns_barrier")
        self.stamp("f3seen")
        def xload(u):
            pre = f"s_add_u32 {s(sJs)}, {s(sJs)}, 4096\n" if u and u % 4 == 0 else ""
            return pre + f"buffer_load_dwordx4 {v(XR+4*u,4)}, {v(vD)}, {s(SRD,4)}, {s(sJs)} offen offset:{(u%4)*1024} sc1"
        def stats_math():
            o = ""
            for j in (4, 2, 1):
                for i in range(j): o += f"v_add_f32 {v(RC+2*i)}, {v(RC+2*i)}, {v(RC+2*i+2*j)}\nv_add_f32 {v(RC+2*i+1)}, {v(RC+2*i+1)}, {v(RC+2*i+1+2*j)}\n"
            o += f"v_mov_b32 {v(RC+2)}, {v(RC)}\nv_mov_b32 {v(RC+3)}, {v(RC+1)}\ns_nop 1\nv_permlane32_swap_b32 {v(RC)}, {v(RC+2)}\nv_permlane32_swap_b32 {v(RC+1)}, {v(RC+3)}\n"
            o += f"v_add_f32 {v(RC)}, {v(RC)}, {v(RC+2)}\nv_add_f32 {v(RC+1)}, {v(RC+1)}, {v(RC+3)}\nv_mul_f32 {v(RC)}, {f2u(-1/640):#x}, {v(RC)}\nv_mul_f32 {v(RC+1)}, {f2u(1/640):#x}, {v(RC+1)}\n"
            o += f"v_fma_f32 {v(RC+1)}, -{v(RC)}, {v(RC)}, {v(RC+1)}\nv_max_f32 {v(RC+1)}, 0, {v(RC+1)}\nv_add_f32 {v(RC+1)}, {f2u(1e-5):#x}, {v(RC+1)}\n"
            o += f"v_rsq_f32 {v(rs)}, {v(RC+1)}\ns_nop 0\nv_mul_f32 {v(RC+1)}, {v(RC+1)}, {v(rs)}\n"
            for j in range(2):
                x = RC + j; hi = RC + 2 + j; lo = RC + 4 + j
                o += f"v_cvt_pk_bf16_f32 {v(hi)}, {v(x)}, {v(x)}\nv_and_b32 {v(hi)}, 0xffff0000, {v(hi)}\nv_sub_f32 {v(lo)}, {v(x)}, {v(hi)}\n"
            o += f"v_cvt_pk_bf16_f32 {v(UT)}, {v(RC+2)}, {v(RC+2)}\nv_cvt_pk_bf16_f32 {v(UT+1)}, {v(RC+4)}, {v(RC+3)}\nv_cvt_pk_bf16_f32 {v(UT+2)}, {v(RC+3)}, {v(RC+5)}\nv_mov_b32 {v(UT+3)}, 0\n"
            return o
        def epilogue(j, acc, va):
            o = []
            for g in range(4): o.append(("lds", f"ds_read_b128 {v(RC+4*g,4)}, {v(va)} offset:{g*1024}", f"R{j}_{g}"))
            for g in (0, 2, 1, 3):
                o.append(("use", f"v_add_f32 {v(acc+4*g)}, {v(acc+4*g)}, {v(RC+4*g)}", [f"R{j}_{g}"]))
                for i in range(1, 4): o.append(("op", f"v_add_f32 {v(acc+4*g+i)}, {v(acc+4*g+i)}, {v(RC+4*g+i)}"))
            for i in range(0, 8, 2):
                P = [(acc + i + d, acc + 8 + i + d, E + 2 * d, E + 2 * d + 1) for d in range(2)]
                for G_, U_, e0, e1 in P: o.append(("op", f"v_mul_f32 {v(G_)}, {v(G_)}, {v(rs)}"))
                for G_, U_, e0, e1 in P: o.append(("op", f"v_mul_f32 {v(e0)}, {v(G_)}, {v(G_)}"))
                for G_, U_, e0, e1 in P: o.append(("op", f"v_mov_b32 {v(e1)}, {s(sG2)}"))
                for G_, U_, e0, e1 in P: o.append(("op", f"v_fmac_f32 {v(e1)}, {s(sT5)}, {v(e0)}"))
                for G_, U_, e0, e1 in P: o.append(("op", f"v_mul_f32 {v(e1)}, {v(e1)}, {v(G_)}"))
                for G_, U_, e0, e1 in P: o.append(("op", f"v_exp_f32 {v(e1)}, {v(e1)}"))
                for G_, U_, e0, e1 in P: o.append(("op", f"v_mul_f32 {v(U_)}, {v(U_)}, {v(rs)}"))
                for G_, U_, e0, e1 in P: o.append(("op", f"v_add_f32 {v(e1)}, 1.0, {v(e1)}"))
                for G_, U_, e0, e1 in P: o.append(("op", f"v_rcp_f32 {v(e1)}, {v(e1)}"))
                for G_, U_, e0, e1 in P: o.append(("op", f"v_mul_f32 {v(G_)}, {v(G_)}, {v(U_)}"))
                for G_, U_, e0, e1 in P: o.append(("op", f"v_mul_f32 {v(G_)}, {v(G_)}, {v(e1)}"))
                o.append(("op", f"v_cvt_pk_bf16_f32 {v(HO+i//2)}, {v(acc+i)}, {v(acc+i+1)}"))
            o.append(("op", f"s_add_u32 {s(sT4)}, {s(sA)}, {j*16384}\nbuffer_store_dwordx4 {v(HO,4)}, {v(vD)}, {s(SRD,4)}, {s(sT4)} offen sc1"))
            return o
        def emit(sc, e):
            if e[0] == "op": sc.op(e[1])
            elif e[0] == "lds": sc.lds(e[1], e[2])
            else: sc.use(e[1], e[2])
        def publish(n):
            L = a.newlabel("Lf4")
            return (f"s_cmp_lg_u32 {s(sWave)}, 0\ns_cbranch_scc1 {L}\ns_add_u32 {s(sT1)}, {s(sN)}, {n}\ns_lshl_b32 {s(sT0)}, {s(sId)}, 7\ns_add_u32 {s(sT0)}, {s(sT0)}, {F4:#x}\n"
                    f"v_mov_b32 {v(t)}, {s(sT1)}\nv_mov_b32 {v(t+1)}, 0\ns_mov_b64 exec, 1\nbuffer_store_dword {v(t)}, {v(t+1)}, {s(SRD,4)}, {s(sT0)} offen sc1\ns_mov_b64 exec, -1\n{L}:")
        def uvload(j): return f"s_add_u32 {s(sT4)}, {s(sD)}, {j*16384}\nbuffer_load_dwordx4 {v(UW,4)}, {v(vD)}, {s(SRD,4)}, {s(sT4)} offen sc1"
        def uvmfma(acc): return f"v_mfma_f32_32x32x16_bf16 {v(acc,16)}, {v(UW,4)}, {v(UT,4)}, {v(acc,16)}"
        def tdma(j):
            keep = self.a; self.a = Asm(); self.p4_tile_dma(j); o = self.a.text(); self.a = keep
            return o
        for u in range(8): a(xload(u))
        a(f"s_cmp_ge_u32 {s(sWave)}, 4\ns_cbranch_scc1 Lp4b")
        for kh in range(2):
            if kh: a.label("Lp4b")
            vm = VM()
            for u in range(8): vm.add(f"X{u}")
            sc = Sched()
            WB = [WF, WF + 4, WF + 8, UT, UW, HO]
            def ld2(u):
                for d in range(2): sc.lds(f"ds_read_b128 {v(WB[(2*u+d)%6],4)}, {v(vW)} offset:{d*40960 + u*1024}", f"W{u}_{d}")
            ld2(0); ld2(1)
            for u in range(20):
                if u + 2 < 20: ld2(u + 2)
                sc.op(vm.wait(f"X{u}"))
                for d in range(2):
                    acc = AC + 16 * d
                    sc.use(f"v_mfma_f32_32x32x16_bf16 {v(acc,16)}, {v(WB[(2*u+d)%6],4)}, {v(XR+4*u,4)}, {'0' if u == 0 else v(acc,16)}", [f"W{u}_{d}"])
                    if u < 6: sc.op(xload(8 + 2*u + d)); vm.add(f"X{8+2*u+d}")
                if u == 6:
                    sc.op(f"s_lshl_b32 {s(sT0)}, {s(sC_)}, 12\ns_add_u32 {s(sT0)}, {s(sT0)}, {ST:#x}")
                if 6 <= u < 10:
                    for i in (2*(u-6), 2*(u-6)+1): sc.op(f"buffer_load_dwordx2 {v(RC+2*i,2)}, {v(vS)}, {s(SRD,4)}, {s(sT0)} offen offset:{i*256} sc1")
                    vm.add("ST", 2)
            sc.op(vm.wait("ST")); sc.op(stats_math())
            sc.op(f"v_add_u32 {v(vS)}, {X2}, {v(vX)}")
            snd = AC + 16 * (1 - kh)
            for g in range(4): sc.op(f"ds_write_b128 {v(vS if kh else vX)}, {v(snd+4*g,4)} offset:{g*1024}")
            sc.op(f"v_add_u32 {v(vW)}, 40960, {v(vW)}")
            sc.render(a, loop=False)
            pend_t, pacc, pva = kh, AC + 16 * kh, (vX if kh else vS)
            stored = {}
            for j in range(2, 7):
                recv = (j & 1) == kh
                haspend = pend_t is not None
                acc = (AC + 16 if pacc == AC else AC) if haspend else AC
                if j == 6: a(f"s_cmp_ge_u32 {s(sM)}, 12\ns_cbranch_scc1 Lp4x{kh}")
                if j == 2 and kh == 1:
                    a(f"s_cmp_lg_u32 {s(sWave)}, 7\ns_cbranch_scc1 Lq7")
                    p = 132
                    a(f"v_and_b32 {v(p)}, 7, {v(lane)}\nv_lshl_add_u32 {v(p)}, {v(p)}, 4, {s(sM)}\nv_min_u32 {v(p)}, 107, {v(p)}\nv_lshlrev_b32 {v(p)}, 7, {v(p)}\nv_add_u32 {v(p)}, {FU:#x}, {v(p)}")
                    self.poll([(p, p + 1)], lambda: a(f"v_cmp_ne_u32 vcc, {s(sN)}, {v(p+1)}"), "u")
                    a.label("Lq7")
                if j == 6 and kh == 1: self.poll4(3, "p", 7)
                if j == 6: xstate = (pend_t, pacc, pva)
                if kh == 0: self.stamp(f"t{j}b")
                a(vm.wait(f"T{j}", *[f"H{i}" for i, w in stored.items() if w <= j - 2]) + "\ns_waitcnt lgkmcnt(0)\ns_barrier")
                if kh == 0: self.stampw(f"t{j}a")
                a(f"s_setprio {1 if haspend else 0}")
                if j == 2: a(uvload(kh)); vm.add(f"U{kh}")
                if j >= 4: a(publish(j - 2))
                for i, w in stored.items():
                    if w == j - 2 and OPT["rb"]: a(f"s_add_u32 {s(sT4)}, {s(sA)}, {i*16384}\n" + self.rb(vD, sT4)); vm.add("rb")
                a(f"v_add_u32 {v(vW)}, {(40960 if j % 3 else -81920) & 0xffffffff:#x}, {v(vW)}")
                later = []
                if j == 2: later += [(1, tdma(3), "T3", 5)]
                if j in (3, 4, 5) and not haspend: later += [(1 + i, x_, f"T{j+1}", 1) for i, x_ in enumerate(self.p4_tile_dma2(j + 1))]
                if j == 4 and kh == 0:
                    for n in range(5):
                        _, f, jj = self.pin_list(0)[1][n]
                        later.append((12 + n, f"s_add_u32 {s(sT4)}, {s(sB)}, {self.wd_off(0, f, jj):#x}\nbuffer_load_dwordx4 {v(PIN+40+4*n,4)}, {v(vD)}, {s(SRD,4)}, {s(sT4)} offen sc1", "Wd", 1))
                if j == 6 and kh == 0:
                    hl = [(x_, sg) for sg in range(2) for x_ in self.hdma(sg, True) + self.hdma(sg, True, 1)]
                    later += [(1 + i, x_, f"h{sg}", 1) for i, (x_, sg) in enumerate(hl)]
                sc = Sched()
                def ldW(u): sc.lds(f"ds_read_b128 {v(WF+4*(u%3),4)}, {v(vW)} offset:{u*1024}", f"W{u}")
                ldW(0); ldW(1)
                pend = epilogue(pend_t, pacc, pva) if haspend else []
                u0 = 6 if j == 2 else 1
                per = (len(pend) - 4 + (17 - u0)) // (18 - u0) if pend else 0
                for u in range(20):
                    if u + 2 < 20: ldW(u + 2)
                    sc.use(f"v_mfma_f32_32x32x16_bf16 {v(acc,16)}, {v(WF+4*(u%3),4)}, {v(XR+4*u,4)}, {'0' if u == 0 else v(acc,16)}", [f"W{u}"])
                    if haspend:
                        if u == u0 - 1: sc.op(vm.wait(f"U{pend_t}") + "\n" + uvmfma(pacc))
                        if u == u0:
                            for e in pend[:4]: emit(sc, e)
                            sc.op("s_nop 2")
                        if u > u0:
                            k = u - u0 - 1
                            for e in pend[4 + k*per:4 + (k+1)*per]:
                                emit(sc, e)
                                if "buffer_store" in e[1]: vm.add(f"H{pend_t}"); stored[pend_t] = j
                    for st_, txt, tag, cnt in later:
                        if st_ == u: sc.op(txt); vm.add(tag, cnt)
                    if recv and u == (8 if j == 2 else 4): sc.op(uvload(j)); vm.add(f"U{j}")
                if not recv:
                    sc.op("s_nop 11")
                    for g in range(4): sc.op(f"ds_write_b128 {v(vX)}, {v(acc+4*g,4)} offset:{g*1024}")
                sc.render(a, loop=False)
                pend_t, pacc, pva = (j, acc, vX) if recv else (None, None, None)
            def final(tile, acc):
                sc = Sched(); sc.op(uvmfma(acc))
                ep = epilogue(tile, acc, vX)
                for e in ep[:4]: emit(sc, e)
                sc.op("s_nop 7")
                for e in ep[4:]: emit(sc, e)
                sc.render(a, loop=False)
            if kh == 1: self.poll4(4, "a", 7)
            a(vm.wait("H4", "U6") + "\ns_waitcnt lgkmcnt(0)\ns_barrier\ns_setprio 0")
            a(publish(5))
            if kh == 0:
                final(6, pacc); vm.add("H6")
                a(vm.wait("h1"))
            else:
                self.p5_pre()
            a("s_branch Lp4e")
            a.label(f"Lp4x{kh}")
            a("s_waitcnt vmcnt(0) lgkmcnt(0)\ns_barrier\ns_setprio 0")
            a(publish(5))
            if kh == 1:
                final(5, xstate[1])
                self.poll4(4, "q", 7)
            a("s_barrier")
            for sg in range(2): a(self.hdma(sg))
            if kh == 1: self.p5_pre()
            a("s_waitcnt vmcnt(0)")
            if kh == 0: a("s_branch Lp4e")
        a.label("Lp4e")
        self.stamp("p4c")
        a("s_barrier")
        self.stamp("p4")
        def pub7():
            a(publish(7))
            if OPT["rb"]:
                a(f"s_lshr_b32 {s(sT0)}, {s(sWave)}, 2\ns_lshl_b32 {s(sT0)}, {s(sT0)}, 14\ns_add_u32 {s(sT4)}, {s(sA)}, {5*16384}\ns_add_u32 {s(sT4)}, {s(sT4)}, {s(sT0)}\n" + self.rb(vD, sT4))
        self.pub7 = pub7
        R.free("XR", "AC", "WF", "RC", "UT", "UW", "E", "HO")

    def p5(self):
        a, R = self.a, self.R
        t, lane, vD, X1 = R["t"], R["lane"], R["vD"], R["X1"]
        ACC = R.alloc("ACC", 48, at=16); TOK = R.alloc("TOK", 32, at=64); vT = R.alloc("vT", 4, at=116)
        vT2 = R.alloc("vT2", 4, at=120); vA = R.alloc("vA", at=125)
        free0 = [96, 100, 104, 108, 112] + list(range(136, 176, 4))
        self.tok_addr(vT, 20 * K, 16384, 4)
        for i in range(4): a(f"v_add_u32 {v(vT2+i)}, {72*K}, {v(vT+i)}")
        a(f"s_cmp_ge_u32 {s(sWave)}, 4\ns_cbranch_scc1 Lp5b")
        for fp in range(2):
            if fp: a.label("Lp5b")
            nf = 3 - fp
            wd = self.pin_list(fp)[1]
            reg = {n: PIN + 40 + 4 * n for n in range(20)}
            free = list(free0)
            vm = VM(); vm.add("pre")
            if fp == 1: vm.add("h2", 8); vm.add("h3", 8)
            nxt = [20]
            def wload():
                if nxt[0] >= len(wd) or not free: return None
                n = nxt[0]; nxt[0] += 1
                reg[n] = free.pop(0)
                _, f, j = wd[n]
                vm.add(f"w{n}")
                return f"s_add_u32 {s(sT4)}, {s(sB)}, {self.wd_off(fp, f, j):#x}\nbuffer_load_dwordx4 {v(reg[n],4)}, {v(vD)}, {s(SRD,4)}, {s(sT4)} offen sc1"
            for sg in range(7):
                if fp == 1 and sg in (1, 3): self.poll4(5 if sg == 1 else 7, f"{sg}", 7)
                if fp == 0: self.stamp(f"s{sg}b")
                if sg: a(vm.wait("pre", f"h{sg}") + "\ns_waitcnt lgkmcnt(0)\ns_barrier")
                if fp == 0: self.stampw(f"s{sg}a")
                if sg == 1:
                    self.pub7()
                    if OPT["rb"]: vm.add("rb")
                if sg == 6: a(f"s_and_b32 {s(sT0)}, {s(sWave)}, 3\ns_cmp_eq_u32 {s(sT0)}, 3\ns_cbranch_scc1 Lp5s{fp}")
                sc = Sched()
                for e in range(2):
                    for i in range(4):
                        off = self.HSLOT[sg & 3] - 20 * K + e * 2048
                        va = vT + i
                        if off >= 65536: va, off = vT2 + i, off - 72 * K
                        sc.lds(f"ds_read_b128 {v(TOK+16*e+4*i,4)}, {v(va)} offset:{off}", f"T{e}_{i}")
                hq = []
                if fp == 1:
                    for h_ in {1: (4,), 3: (5, 6)}.get(sg, ()):
                        hq += [(x_, h_) for x_ in self.hdma(h_, True) + self.hdma(h_, True, -1)]
                hper = len(hq) // 8
                sc.op(vm.wait(*[f"w{n}" for n in range(2 * sg * nf, 2 * (sg + 1) * nf)]))
                for e in range(2):
                    for i in range(4):
                        for f in range(nf):
                            d = ACC + (f * 4 + i) * 4
                            n = (2 * sg + e) * nf + f
                            sc.use(f"v_mfma_f32_16x16x32_bf16 {v(d,4)}, {v(reg[n],4)}, {v(TOK+16*e+4*i,4)}, {'0' if sg == 0 and e == 0 else v(d,4)}", [f"T{e}_{i}"])
                        w = wload() if (fp == 0 or sg in (0, 2)) else None
                        if w: sc.op(w)
                        for _ in range(hper):
                            x_, h_ = hq.pop(0); sc.op(x_); vm.add(f"h{h_}")
                sc.render(a, loop=False)
                for n in range(2 * sg * nf, 2 * (sg + 1) * nf): free.append(reg[n])
            a.label(f"Lp5s{fp}")
            a("s_waitcnt vmcnt(0)\ns_barrier")
            if fp == 0: self.stamp("p5m")
            self.reduce4(fp, ACC, TOK, vT)
            GB = TOK; XO = 96
            a(f"v_lshrrev_b32 {v(t)}, 4, {v(lane)}\nv_lshlrev_b32 {v(t+1)}, 4, {v(t)}")
            for f in range(nf): a(f"ds_read_b128 {v(GB+4*f,4)}, {v(t+1)} offset:{L_TA + 320 + (3*fp+f)*64}")
            self.row_col(vA, None)
            a("s_waitcnt lgkmcnt(0)")
            for f in range(nf):
                d = ACC + 16 * f
                for j in range(2):
                    x = X1 + 2 * f + j
                    a(f"v_lshlrev_b32 {v(t)}, 16, {v(x)}\nv_and_b32 {v(t+1)}, 0xffff0000, {v(x)}")
                    a(f"v_fmac_f32 {v(t)}, {v(GB+4*f+2*j)}, {v(d+2*j)}\nv_fmac_f32 {v(t+1)}, {v(GB+4*f+2*j+1)}, {v(d+2*j+1)}\nv_cvt_pk_bf16_f32 {v(XO+2*f+j)}, {v(t)}, {v(t+1)}")
                a(f"global_store_dwordx2 {v(vA)}, {v(XO+2*f,2)}, {s(P_OUT,2)} offset:{32*f}")
            if fp == 0: a("s_branch Lp5e")
        a.label("Lp5e")
        self.stamp("end")
        R.free("ACC", "TOK", "vT", "vT2", "vA")

    def finish(self):
        a, R = self.a, self.R
        t = R["t"]; lane = R["lane"]
        if self.stamps:
            a("s_waitcnt lgkmcnt(0)")
            a(f"s_cmp_lg_u32 {s(sWave)}, 0\ns_cbranch_scc1 Lst")
            a(f"s_lshl_b32 {s(sT0)}, s2, 7\ns_add_u32 {s(sT0)}, {s(sT0)}, {DBG + 0x800000:#x}\nv_mov_b32 {v(t+1)}, 0")
            for i in range(self.nst):
                a(f"v_mov_b32 {v(t)}, {s(sStamp+2*i)}\nbuffer_store_dword {v(t)}, {v(t+1)}, {s(SRD,4)}, {s(sT0)} offen offset:{4*i}")
            if self.stamps == "dbg":
                a(f"s_cmp_lg_u32 s2, 37\ns_cbranch_scc1 Lst")
                for i in range(self.nst):
                    a(f"s_sub_u32 {s(sT0)}, {s(sStamp+2*i)}, {s(sStamp)}\nv_mov_b32 {v(t)}, {s(sT0)}\nglobal_store_dword {v(t+1)}, {v(t)}, {s(P_DBG,2)} offset:{4*i}")
            a.label("Lst")
        a(f"s_cmp_lg_u32 s2, 0\ns_cbranch_scc1 Lend\ns_cmp_lg_u32 {s(sWave)}, 0\ns_cbranch_scc1 Lend")
        a(f"s_mov_b32 {s(sT1)}, 0")
        self.flag_store(WS_E, sT1, 0, t)
        a.label("Lend")

    def build(self):
        self.p01()
        a, R = self.a, self.R
        if self.stop == 1:
            t = R["t"]
            a(f"v_lshlrev_b32 {v(t)}, 4, v0\nv_add_u32 {v(t+1)}, {L_X}, {v(t)}\nds_read_b128 v[100:103], {v(t+1)}\nds_read_b128 v[104:107], {v(t+1)} offset:8192")
            a(f"s_lshl_b32 {s(sT0)}, {s(sId)}, 14\ns_add_u32 {s(sT0)}, {s(sT0)}, {DBG:#x}\ns_waitcnt lgkmcnt(0)")
            a(f"buffer_store_dwordx4 v[100:103], {v(t)}, {s(SRD,4)}, {s(sT0)} offen\ns_add_u32 {s(sT0)}, {s(sT0)}, 8192\nbuffer_store_dwordx4 v[104:107], {v(t)}, {s(SRD,4)}, {s(sT0)} offen")
        regs = None
        if self.stop >= 2:
            regs = dict(Qr=(10, 2), Qm=(12, 8), SA=(20, 32), SB=(52, 32), O=(84, 32), Km=(116, 4), V=(120, 8), KR=(128, 4),
                        vK=(4, 1), vR=(5, 1), vV=(6, 1), vDma=(7, 1), vM=(8, 1), vT0=(133, 1))
            self.p2()
        if self.stop >= 3: self.p3()
        if self.stop >= 4: self.p4()
        if self.stop >= 5: self.p5()
        self.finish()
        if regs:
            a("s_endpgm")
            self.slow_path(regs)
        a.label("Lcode_end")
        hdr = open("adaLN_cond__mha_block__geglu_ffn__prompt.s.ref").read().split("; Override")[0]
        hdr += f"; generated by gen/gen.py (hand-written generator): one persistent launch, 256 workgroups x 8 waves\n; @launch grid=(256,1,1) block=(512,1,1) lds={LDS_BYTES}\n"
        body = self.a.text()
        return kernel_wrap(NAME, body, vgpr=256, header=hdr)

if __name__ == "__main__":
    import hazard
    stop = int(sys.argv[1]) if len(sys.argv) > 1 else 99
    g = G(stop=stop, stamps=sys.argv[2] if len(sys.argv) > 2 else False)
    txt = g.build()
    hazard.check(txt)
    open("out.s", "w").write(txt)
    print("vgpr high", g.R.high, "lines", txt.count("\n"), getattr(g, "stnames", ""))
```
